```python
import torch

def _softmax(x, axis=-1):
    return torch.softmax(x, dim=axis)
def _gelu(x):
    return torch.nn.functional.gelu(x, approximate="tanh")
def _silu(x):
    return torch.nn.functional.silu(x)
def _sigmoid(x):
    return torch.sigmoid(x)
def _layernorm(x, axis=-1, eps=1e-5):
    m = x.mean(dim=axis, keepdim=True)
    v = x.var(dim=axis, keepdim=True, unbiased=False)
    return (x - m) / torch.sqrt(v + eps)
def _scatter_add(tgt, idx, src, axis=0):
    return tgt.clone().index_add_(axis, idx, src)
def _segment_sum(src, seg, n):
    out = torch.zeros((n,) + src.shape[1:], dtype=src.dtype)
    return out.index_add_(0, seg, src)
def _pad(x, pw):
    flat = tuple(v for pair in reversed(pw) for v in pair)
    return torch.nn.functional.pad(x, flat)

kernel_name = 'concat_heads__ssm_conv_s4__ssm_conv_h3__prompt'

def setup_inputs():

    _w = (lambda a: (lambda t: t.to(torch.bfloat16) if t.is_floating_point() else t)(torch.as_tensor(a)))
    def _A_setup():
        B, L, D, N = 1, 2048, 1024, 128
        A_re = -(lambda _x: torch.exp(torch.as_tensor(_x)))((lambda *s: torch.randn(*s, dtype=torch.bfloat16) * 3.2)(D, N))
        A_im = torch.pi * (lambda *s: torch.randn(*s, dtype=torch.bfloat16) * 0.05)(D, N)
        B_re = (lambda *s: torch.randn(*s, dtype=torch.bfloat16) * 0.1)(D, N)
        B_im = (lambda *s: torch.randn(*s, dtype=torch.bfloat16) * 0.1)(D, N)
        C_re = (lambda *s: torch.randn(*s, dtype=torch.bfloat16) * 0.1)(D, N)
        C_im = (lambda *s: torch.randn(*s, dtype=torch.bfloat16) * 0.1)(D, N)
        log_dt = (lambda *s: torch.randn(*s, dtype=torch.bfloat16) * 0.05)(D) * 0.5 - 4.0
        Dskip = (lambda *s: torch.randn(*s, dtype=torch.bfloat16) * 0.05)(D)
        return {
            "u": _w((lambda *s: torch.randn(*s, dtype=torch.bfloat16) * 0.05)(B, L, D)),
            "A_re": _w(A_re),
            "A_im": _w(A_im),
            "B_re": _w(B_re),
            "B_im": _w(B_im),
            "C_re": _w(C_re),
            "C_im": _w(C_im),
            "log_dt": _w(log_dt),
            "Dskip": _w(Dskip),
        }
    _A_in = _A_setup()

    def _B_setup():
        B, S, D = 1, 2048, 1024
        ks = 4
        return {
            "q": _w((lambda *s: torch.randn(*s, dtype=torch.bfloat16) * 0.05)(B, S, D)),
            "k": _w((lambda *s: torch.randn(*s, dtype=torch.bfloat16) * 0.2)(B, S, D)),
            "v": _w((lambda *s: torch.randn(*s, dtype=torch.bfloat16) * 0.2)(B, S, D)),
            "shift_k": _w((lambda *s: torch.randn(*s, dtype=torch.bfloat16) * 0.2)(D, ks) * 0.5),
            "ssm_k": _w((lambda *s: torch.randn(*s, dtype=torch.bfloat16) * 0.8)(D, S) * (1.0 / S ** 0.5)),
            "ssm_D": _w((lambda *s: torch.randn(*s, dtype=torch.bfloat16) * 0.2)(D)),
        }
    _B_in = _B_setup()

    return {
        "A_u": _A_in["u"],
        "A_A_re": _A_in["A_re"],
        "A_A_im": _A_in["A_im"],
        "A_B_re": _A_in["B_re"],
        "A_B_im": _A_in["B_im"],
        "A_C_re": _A_in["C_re"],
        "A_C_im": _A_in["C_im"],
        "A_log_dt": _A_in["log_dt"],
        "A_Dskip": _A_in["Dskip"],
        "B_q": _B_in["q"],
        "B_k": _B_in["k"],
        "B_v": _B_in["v"],
        "B_shift_k": _B_in["shift_k"],
        "B_ssm_k": _B_in["ssm_k"],
        "B_ssm_D": _B_in["ssm_D"],
    }

def reference(A_u, A_A_re, A_A_im, A_B_re, A_B_im, A_C_re, A_C_im, A_log_dt, A_Dskip, B_q, B_k, B_v, B_shift_k, B_ssm_k, B_ssm_D):
    def _A_ref(u, A_re, A_im, B_re, B_im, C_re, C_im, log_dt, Dskip):
        Bsz, L, D = u.shape
        dt = torch.exp(log_dt)[:, None]
        A = A_re + 1j * A_im
        Bc = B_re + 1j * B_im
        Cc = C_re + 1j * C_im
        logdA = dt * A
        dB = dt * Bc
        l = (lambda x, dt: x.to(dt))(torch.arange(L), A_re.dtype)
        P = torch.exp(logdA[:, :, None] * l[None, None, :])
        K = torch.einsum("dn,dnl,dn->dl", Cc, P, dB).real
        L2 = 2 * L
        Kp = _pad(K, ((0, 0), (0, L)))
        up = (lambda x, *d: x.permute(*d))(u, 0, 2, 1)
        up = _pad(up, ((0, 0), (0, 0), (0, L)))
        Kf = (lambda x, axes=(-2,-1): torch.fft.rfft2(x.float(), dim=axes))(Kp[:, None, :], axes=(-2, -1))
        Uf = (lambda x, axes=(-2,-1): torch.fft.rfft2(x.float(), dim=axes))(up[:, :, None, :], axes=(-2, -1))
        Yf = Uf * Kf[None, :, :, :]
        y = (lambda x, s, axes=(-2,-1): torch.fft.irfft2(x, s=s, dim=axes).to(torch.bfloat16))(Yf, (1, L2), axes=(-2, -1))[:, :, 0, :L]
        y = (lambda x, *d: x.permute(*d))(y, 0, 2, 1) + u * Dskip[None, None, :]
        return y

    def _B_ref(q, k, v, shift_k, ssm_k, ssm_D):
        B, S, D = q.shape
        ks = shift_k.shape[-1]
        k_pad = _pad(k, ((0, 0), (ks - 1, 0), (0, 0)))
        k_shift = torch.zeros_like(k)
        for t in range(ks):
            k_shift = k_shift + k_pad[:, t:t + S, :] * shift_k[:, ks - 1 - t][None, None, :]
        kv = k_shift * v
        L = 2 * S
        kv_pad = _pad(kv, ((0, 0), (0, S), (0, 0)))
        kf_pad = _pad(ssm_k, ((0, 0), (0, S)))
        kv_f = (lambda x, axes=(-2,-1): torch.fft.rfft2(x.float(), dim=axes))(kv_pad[:, None, :, :], axes=(1, 2))
        kf_f = (lambda x, axes=(-2,-1): torch.fft.rfft2(x.float(), dim=axes))(kf_pad[:, None, :], axes=(1, 2))
        kf_f = (lambda x, *d: x.permute(*d))(kf_f, 1, 2, 0)
        y_f = kv_f * kf_f[None, :, :, :]
        y = (lambda x, s, axes=(-2,-1): torch.fft.irfft2(x, s=s, dim=axes).to(torch.bfloat16))(y_f, (1, L), axes=(1, 2))[:, 0, :S, :]
        y = y + kv * ssm_D[None, None, :]
        return q * y

    a = _A_ref(A_u, A_A_re, A_A_im, A_B_re, A_B_im, A_C_re, A_C_im, A_log_dt, A_Dskip)
    b = _B_ref(B_q, B_k, B_v, B_shift_k, B_ssm_k, B_ssm_D)
    return torch.concatenate([a, b], axis=-1)
```

```python
import sys, argparse

NAME = "concat_heads__ssm_conv_s4__ssm_conv_h3__prompt"

KC1 = 0
KC0 = 4576
UC1 = 9120
UC0 = 13344
CS  = 17520
YST = 8 * CS
YCS = 1088
YBUF = 8 * YCS
LDS_TOTAL = YST + 2 * YBUF
TROW = 544

P_U, P_ARE, P_AIM, P_BRE, P_BIM, P_CRE, P_CIM, P_LDT = 16, 18, 20, 22, 24, 26, 28, 30
P_DSK, P_Q, P_K, P_V, P_SHK, P_SSK, P_SSD, P_OUT = 32, 34, 36, 38, 40, 42, 44, 46
R_D0, R_V, R_Q, R_OUT, R_KROW, R_DD = 48, 52, 56, 60, 64, 68
S_ROW = [None, 72, 73, 74]
S_ROW2 = [75, 76, 77, 78]
S_1M, S_3M, S_4M, S_6M = 79, 80, 81, 82
S_W, S_CG, S_CH, S_T0, S_T1, S_SELLO, S_SELHI, S_MASK, S_LB = 83, 84, 85, 86, 87, 88, 89, 90, 91
S_TS = 92
V_LANE = 0
V_A, V_B, V_YW, V_YR, V_COL, V_HALO, V_HALO2, V_QO, V_OO, V_U1, V_U0A, V_U0B = range(1, 13)
V_X0, V_X1, V_X2 = 13, 14, 15
V_W = 16
V_DK = 24
V_DV = 35
V_TSV = 43
V_Q = 44
V_TMP = 60
V_ACC = 88
V_BR = 120
V_AR = 136
V_AC = 160
NCACHE = 3
NAR = 6


class Em:
    def __init__(self):
        self.lines = []
        self.vm = []
        self.lg = []
        self.nts = 0

    def __call__(self, s):
        self.lines.append("    " + s)

    def label(self, s):
        self.lines.append(s + ":")

    def c(self, s):
        self.lines.append("    ; " + s)

    def vmem(self, s, tag):
        self(s)
        self.vm.append(tag)

    def lds(self, s, tag=None):
        self(s)
        self.lg.append(tag)

    def _need(self, q, tags):
        idx = -1
        for i, t in enumerate(q):
            if t in tags:
                idx = i
        return idx

    def wait_vm(self, *tags):
        idx = self._need(self.vm, tags)
        if idx < 0:
            return
        n = len(self.vm) - 1 - idx
        assert n <= 63
        self("s_waitcnt vmcnt(%d)" % n)
        self.vm = self.vm[idx + 1:]

    def wait_lg(self, *tags):
        idx = self._need(self.lg, tags)
        if idx < 0:
            return False
        n = len(self.lg) - 1 - idx
        n = min(n, 15)
        self("s_waitcnt lgkmcnt(%d)" % n)
        self.lg = self.lg[len(self.lg) - n:] if n else []
        return True

    def wait_lg_all(self):
        if self.lg:
            self("s_waitcnt lgkmcnt(0)")
        self.lg = []

    def barrier(self):
        self.wait_lg_all()
        self("s_barrier")


def vr(b, n):
    return "v[%d:%d]" % (b, b + n - 1)


def srd(b):
    return "s[%d:%d]" % (b, b + 3)


def stamp(e, cfg, idx):
    if not cfg.stamps:
        return
    e.wait_lg_all()
    e("s_memtime s[%d:%d]" % (S_TS, S_TS + 1))
    e("s_waitcnt lgkmcnt(0)")
    e("v_writelane_b32 v%d, s%d, %d" % (V_TSV, S_TS, idx))


def stamp_flush(e, cfg):
    if not cfg.stamps:
        return
    e("s_memrealtime s[%d:%d]" % (S_TS, S_TS + 1))
    e("s_waitcnt lgkmcnt(0)")
    e("v_writelane_b32 v%d, s%d, %d" % (V_TSV, S_TS, 63))
    e("s_lshl_b32 s%d, s2, 3" % S_T0)
    e("s_add_u32 s%d, s%d, s%d" % (S_T0, S_T0, S_W))
    e("s_lshl_b32 s%d, s%d, 8" % (S_T0, S_T0))
    e("v_lshlrev_b32 v%d, 2, v%d" % (V_X0, V_LANE))
    e("v_add_u32 v%d, s%d, v%d" % (V_X0, S_T0, V_X0))
    e("global_store_dword v%d, v%d, s[94:95]" % (V_X0, V_TSV))


def mk_srd(e, r, p, nbytes):
    e("s_mov_b32 s%d, s%d" % (r, p))
    e("s_mov_b32 s%d, s%d" % (r + 1, p + 1))
    e("s_mov_b32 s%d, 0x%x" % (r + 2, nbytes))
    e("s_mov_b32 s%d, 0x20000" % (r + 3))


def col_row(e, dst, voff, rs, row, second, tag):
    so = (S_ROW2 if second else S_ROW)[row >> 1]
    so = "0" if so is None else "s%d" % so
    off = " offset:2048" if row & 1 else ""
    e.vmem("buffer_load_dword v%d, v%d, %s, %s offen%s" % (dst, voff, srd(rs), so, off), tag)


def issue_set_B(e, second, tag):
    vh = V_HALO2 if second else V_HALO
    for i in range(3):
        so = "0" if i < 2 else "s%d" % S_ROW[1]
        off = " offset:2048" if i == 1 else ""
        e.vmem("buffer_load_dword v%d, v%d, %s, %s offen%s" % (V_DK + i, vh, srd(R_D0), so, off), tag)
    for r in range(8):
        col_row(e, V_DK + 3 + r, V_COL, R_D0, r, second, tag)
    for r in range(8):
        col_row(e, V_DV + r, V_COL, R_V, r, second, tag)


def issue_set_A(e, second, tag):
    base = V_DV if second else V_DK
    for r in range(8):
        col_row(e, base + r, V_COL, R_D0, r, second, tag)


def write_u(e, out, z, second):
    adj = 0 if second else 2048
    e.lds("ds_write_b128 v%d, %s offset:%d" % (V_U1, vr(out, 4), adj + z * CS))
    va = V_U0B if z else V_U0A
    if second:
        e.lds("ds_write2_b32 v%d, v%d, v%d offset0:0 offset1:1" % (va, out, out + 1))
        e.lds("ds_write2_b32 v%d, v%d, v%d offset0:2 offset1:3" % (va, out + 2, out + 3))
    else:
        e("v_add_u32 v%d, 2048, v%d" % (V_X0, va))
        e.lds("ds_write2_b32 v%d, v%d, v%d offset0:0 offset1:1" % (V_X0, out, out + 1))
        e.lds("ds_write2_b32 v%d, v%d, v%d offset0:2 offset1:3" % (V_X0, out + 2, out + 3))


def process_B(e, second):
    KU = V_TMP
    R = V_TMP + 11
    T = V_TMP + 19
    OUT = [V_TMP + 20, V_TMP + 24]
    for z in range(2):
        w = V_W + 4 * z
        for i in range(11):
            if z == 0:
                e("v_lshlrev_b32 v%d, 16, v%d" % (KU + i, V_DK + i))
            else:
                e("v_and_b32 v%d, s%d, v%d" % (KU + i, S_MASK, V_DK + i))
        for t in range(8):
            e("v_mul_f32 v%d, v%d, v%d" % (R + t, KU + t, w + 3))
        for tap in (2, 1, 0):
            for t in range(8):
                e("v_fmac_f32 v%d, v%d, v%d" % (R + t, KU + t + 3 - tap, w + tap))
        for t in range(8):
            if z == 0:
                e("v_lshlrev_b32 v%d, 16, v%d" % (KU + t, V_DV + t))
            else:
                e("v_and_b32 v%d, s%d, v%d" % (KU + t, S_MASK, V_DV + t))
        for t in range(8):
            e("v_mul_f32 v%d, v%d, v%d" % (R + t, R + t, KU + t))
        for d in range(4):
            e("v_cvt_pk_bf16_f32 v%d, v%d, v%d" % (OUT[z] + d, R + 7 - 2 * d, R + 6 - 2 * d))
        write_u(e, OUT[z], z, second)


def process_A(e, second):
    base = V_DV if second else V_DK
    OUT = [V_TMP + 20, V_TMP + 24]
    for z in range(2):
        sel = S_SELHI if z else S_SELLO
        for d in range(4):
            e("v_perm_b32 v%d, v%d, v%d, s%d" % (OUT[z] + d, base + 6 - 2 * d, base + 7 - 2 * d, sel))
        write_u(e, OUT[z], z, second)


def issue_q(e, ph):
    so = ["0", "s%d" % S_1M, "s%d" % S_ROW2[0], "s%d" % S_3M][ph]
    e.vmem("buffer_load_dwordx4 %s, v%d, %s, %s offen" % (vr(V_Q + 4 * ph, 4), V_QO, srd(R_Q), so), "q%d" % ph)


def epilogue(e, typ, ph):
    Y = V_TMP
    T = V_TMP + 4
    O = V_TMP + 20 + 4 * (ph & 1)
    off = (ph & 1) * YBUF
    dst = Y if typ == "B" else O
    e.lds("ds_read_b64_tr_b16 %s, v%d offset:%d" % (vr(dst, 2), V_YR, off), "y")
    e.lds("ds_read_b64_tr_b16 %s, v%d offset:%d" % (vr(dst + 2, 2), V_YR, off + 4 * YCS), "y")
    if typ == "B":
        e.wait_vm("q%d" % ph)
        q = V_Q + 4 * ph
        for d in range(4):
            e("v_lshlrev_b32 v%d, 16, v%d" % (T + 2 * d, q + d))
            e("v_and_b32 v%d, s%d, v%d" % (T + 2 * d + 1, S_MASK, q + d))
        e.wait_lg("y")
        for d in range(4):
            e("v_lshlrev_b32 v%d, 16, v%d" % (T + 8 + 2 * d, Y + d))
            e("v_and_b32 v%d, s%d, v%d" % (T + 8 + 2 * d + 1, S_MASK, Y + d))
        for i in range(8):
            e("v_mul_f32 v%d, v%d, v%d" % (T + i, T + i, T + 8 + i))
        for d in range(4):
            e("v_cvt_pk_bf16_f32 v%d, v%d, v%d" % (O + d, T + 2 * d, T + 2 * d + 1))
    else:
        e.wait_lg("y")
    so = ["0", "s%d" % S_ROW2[0], "s%d" % S_4M, "s%d" % S_6M][ph]
    e.vmem("buffer_store_dwordx4 %s, v%d, %s, %s offen" % (vr(O, 4), V_OO, srd(R_OUT), so), "st")


class ConvState:
    def __init__(self):
        self.acc_init = [False] * 8
        self.cached = set()
        self.aslot = 0
        self.bslot = 0


def conv_phase(e, st, ph, cfg):
    r0, r1 = 2 * ph, 2 * ph + 1
    Q = 8 - r0
    mf = []
    for s in range(8):
        for q in range(Q):
            mf.append((r0 + q, ("A", q, s), ("B", r0, s)))
            if r1 + q <= 7:
                mf.append((r1 + q, ("A", q, s), ("B", r1, s)))
    reg = {}
    last_use = {}
    order = []
    for n, (p, a, b) in enumerate(mf):
        for f in (b, a):
            last_use[f] = n
            if f not in reg:
                if f[0] == "A" and f[1] < NCACHE:
                    reg[f] = V_AC + 4 * (f[1] * 8 + f[2])
                    if f in st.cached:
                        continue
                    st.cached.add(f)
                    order.append(f)
                elif f[0] == "A":
                    reg[f] = V_AR + 4 * (st.aslot % NAR)
                    st.aslot += 1
                    order.append(f)
                else:
                    reg[f] = V_BR + 4 * (st.bslot % 4)
                    st.bslot += 1
                    order.append(f)
    prev = {}
    occ = {}
    for f in order:
        prev[f] = occ.get(reg[f])
        occ[reg[f]] = f

    def issue(f):
        if f[0] == "A":
            e.lds("ds_read_b128 %s, v%d offset:%d" % (vr(reg[f], 4), V_A, 64 * (8 * f[1] + f[2])), f)
            return 1
        off = 3640 - 512 * f[1] + 64 * f[2]
        e.lds("ds_read_b64 %s, v%d offset:%d" % (vr(reg[f], 2), V_B, off), f)
        e.lds("ds_read_b64 %s, v%d offset:%d" % (vr(reg[f] + 2, 2), V_B, off + 8), f)
        return 2

    nxt = 0

    def can_issue(done):
        if nxt >= len(order):
            return False
        f = order[nxt]
        pv = prev[f]
        if pv is not None and last_use[pv] >= done:
            return False
        return len(e.lg) + (1 if f[0] == "A" else 2) <= cfg.maxlg

    first_use = {}
    for n, (p, a, b) in enumerate(mf):
        for f in (a, b):
            first_use.setdefault(f, n)
    while can_issue(0):
        issue(order[nxt]); nxt += 1
    ydone = None
    ylast = max(n for n, m in enumerate(mf) if m[0] in (r0, r1))
    since = None
    staged = False

    def ystage():
        O = V_TMP + 20
        for z in range(2):
            a = V_ACC + 4 * (r0 + z)
            e("v_cvt_pk_bf16_f32 v%d, v%d, v%d" % (O + 2 * z, a, a + 1))
            e("v_cvt_pk_bf16_f32 v%d, v%d, v%d" % (O + 2 * z + 1, a + 2, a + 3))
        for z in range(2):
            e.lds("ds_write_b64 v%d, %s offset:%d" % (V_YW, vr(O + 2 * z, 2), (ph & 1) * YBUF + 512 * z))

    for n, (p, a, b) in enumerate(mf):
        while nxt < len(order) and first_use[order[nxt]] <= n:
            issue(order[nxt]); nxt += 1
        e.wait_lg(a, b)
        c = vr(V_ACC + 4 * p, 4) if st.acc_init[p] else "0"
        st.acc_init[p] = True
        e("v_mfma_f32_16x16x32_bf16 %s, %s, %s, %s" % (vr(V_ACC + 4 * p, 4), vr(reg[a], 4), vr(reg[b], 4), c))
        k = 0
        while k < 2 and can_issue(n + 1):
            k += issue(order[nxt]); nxt += 1
        if n >= ylast + 8 and not staged:
            ystage(); staged = True
    if not staged:
        gap = len(mf) - 1 - ylast
        e("s_nop %d" % (7 - gap))
        ystage()


def cmul(e, o, a, b):
    for m in range(2):
        e("v_mul_f32 v%d, v%d, v%d" % (o[m][0], a[m][0], b[m][0]))
        e("v_mul_f32 v%d, v%d, v%d" % (o[m][1], a[m][0], b[m][1]))
    for m in range(2):
        e("v_fmac_f32 v%d, v%d, v%d" % (o[m][0], a[m][1], b[m][2]))
        e("v_fmac_f32 v%d, v%d, v%d" % (o[m][1], a[m][1], b[m][0]))


def kgen(e, cfg, mid_hook):
    RAW = 60
    F = 68
    w1 = [(80, 81, 82), (83, 84, 85)]
    w128 = [(86, 87, 88), (89, 90, 91)]
    l1 = [(92, 93, 94), (95, 96, 97)]
    TT = 98
    PK = 110
    VT_W, VT_R, VT_R2 = 118, 119, 98
    HA = 120
    HB = 152
    LB = 184
    AF = 216
    T0, T1, T2 = 248, 252, 100
    H = lambda base, y: [(base + 4 * y, base + 4 * y + 1), (base + 4 * y + 2, base + 4 * y + 3)]
    e("v_lshlrev_b32 v%d, 3, v%d" % (VT_W, V_LANE))
    e("v_add_u32 v%d, s%d, v%d" % (VT_W, S_LB, VT_W))
    e("v_and_b32 v%d, 15, v%d" % (V_X0, V_LANE))
    e("v_mul_u32_u24 v%d, %d, v%d" % (VT_R, TROW, V_X0))
    e("v_lshrrev_b32 v%d, 4, v%d" % (V_X1, V_LANE))
    e("v_lshl_add_u32 v%d, v%d, 4, v%d" % (VT_R, V_X1, VT_R))
    e("v_add_u32 v%d, s%d, v%d" % (VT_R, S_LB, VT_R))
    e.wait_vm("par")
    stamp(e, cfg, 1)
    e("v_lshlrev_b32 v66, 16, v66")
    e("v_mul_f32 v66, 0x3fb8aa3b, v66")
    e("v_exp_f32 v66, v66")
    for p in range(6):
        e("v_lshlrev_b32 v%d, 16, v%d" % (F + 2 * p, RAW + p))
        e("v_and_b32 v%d, s%d, v%d" % (F + 2 * p + 1, S_MASK, RAW + p))
    e("v_cvt_pk_bf16_f32 v66, v66, v66")
    e("v_and_b32 v66, s%d, v66" % S_MASK)
    e("v_lshlrev_b32 v%d, 16, v67" % T0)
    e("v_mov_b32 v%d, 0" % (T0 + 1))
    e("v_mov_b32 v%d, 0" % (T0 + 2))
    e("v_mov_b32 v%d, 0" % (T0 + 3))
    for i in range(8):
        e("v_mul_f32 v%d, v66, v%d" % (F + i, F + i))
    for m in range(2):
        e("v_mul_f32 v%d, 0x3fb8aa3b, v%d" % (F + m, F + m))
        e("v_mul_f32 v%d, 0.15915494, v%d" % (F + 2 + m, F + 2 + m))

    def direct(dst, mult, conj):
        for m in range(2):
            t = TT + 4 * m
            if mult == 1:
                e("v_exp_f32 v%d, v%d" % (t, F + m))
                e("v_fract_f32 v%d, v%d" % (t + 1, F + 2 + m))
            else:
                lit = {8: "0x41000000", 128: "0x43000000"}[mult]
                e("v_mul_f32 v%d, %s, v%d" % (t, lit, F + m))
                e("v_mul_f32 v%d, %s, v%d" % (t + 1, lit, F + 2 + m))
                e("v_exp_f32 v%d, v%d" % (t, t))
                e("v_fract_f32 v%d, v%d" % (t + 1, t + 1))
        for m in range(2):
            t = TT + 4 * m
            e("v_cos_f32 v%d, v%d" % (t + 2, t + 1))
            e("v_sin_f32 v%d, v%d" % (t + 3, t + 1))
        e("s_nop 0")
        for m in range(2):
            t = TT + 4 * m
            pos, neg = (dst[m][2], dst[m][1]) if conj else (dst[m][1], dst[m][2])
            e("v_mul_f32 v%d, v%d, v%d" % (dst[m][0], t, t + 2))
            e("v_mul_f32 v%d, v%d, v%d" % (pos, t, t + 3))
            e("v_sub_f32 v%d, 0, v%d" % (neg, pos))

    pkn = [0]

    def put(val, slot):
        p = PK + 2 * (pkn[0] % 4)
        pkn[0] += 1
        for m in range(2):
            e("v_cvt_pk_bf16_f32 v%d, v%d, v%d" % (p + m, val[m][0], val[m][1]))
        e.lds("ds_write_b64 v%d, %s offset:%d" % (VT_W, vr(p, 2), slot * TROW))

    def read_frags(dst, va, tag):
        for ks in range(8):
            e.lds("ds_read_b128 %s, v%d offset:%d" % (vr(dst + 4 * ks, 4), va, 64 * ks), tag)

    def mfmas(acc, first_zero):
        for ks in range(8):
            c = "0" if (first_zero and ks == 0) else vr(acc, 4)
            e("v_mfma_f32_16x16x32_bf16 %s, %s, %s, %s" % (vr(acc, 4), vr(AF + 4 * ks, 4), vr(LB + 4 * ks, 4), c))

    direct(l1, 8, True)
    p = PK + 6
    e("v_mov_b32 v%d, 0x3f80" % p)
    e("v_mov_b32 v%d, 0x3f80" % (p + 1))
    e.lds("ds_write_b64 v%d, %s offset:0" % (VT_W, vr(p, 2)))
    put(l1, 1)
    cur = l1
    for j in range(2, 16):
        o = H(HB, j & 1)
        cmul(e, o, cur, l1)
        put(o, j)
        cur = o
    read_frags(LB, VT_R, "lo")
    direct(w1, 1, False)
    direct(w128, 128, False)
    h0 = H(HA, 0)
    for m in range(2):
        e("v_mul_f32 v%d, v%d, v%d" % (h0[m][0], F + 8 + m, F + 4 + m))
        e("v_mul_f32 v%d, v%d, v%d" % (h0[m][1], F + 8 + m, F + 6 + m))
    for m in range(2):
        e("v_fma_f32 v%d, -v%d, v%d, v%d" % (h0[m][0], F + 10 + m, F + 6 + m, h0[m][0]))
        e("v_fmac_f32 v%d, v%d, v%d" % (h0[m][1], F + 10 + m, F + 4 + m))
    put(h0, 0)
    for y in range(1, 8):
        cmul(e, H(HA, y), H(HA, y - 1), w1)
        put(H(HA, y), y)
    for y in range(8):
        cmul(e, H(HB, y), H(HA, y), w128)
        put(H(HB, y), 8 + y)
    read_frags(AF, VT_R, "t0")
    for i, y in enumerate((0, 2, 4, 6)):
        cmul(e, H(HA, y), H(HB, y), w128)
        put(H(HA, y), i)
    e.wait_lg("t0")
    mfmas(T0, False)
    for i, y in enumerate((0, 2, 4, 6)):
        cmul(e, H(HB, y), H(HA, y), w128)
        put(H(HB, y), 4 + i)
    src, dst = HB, HA
    for h in range(4, 8):
        for i, y in enumerate((0, 4)):
            cmul(e, H(dst, y), H(src, y), w128)
            put(H(dst, y), 8 + 2 * (h - 4) + i)
        src, dst = dst, src
    read_frags(AF, VT_R, "t1")
    free = [0, 1, 2, 3, 5, 6, 7, 9, 10]
    slot_of = {8 + i: free[i] for i in range(9)}
    slot_of.update({3: 4, 4: 8, 6: 12})
    rows = []
    for g in range(4):
        rows += [8 + 2 * g, 9 + 2 * g, 10 + 2 * g, [3, 4, 6, 8][g]]
    nib = 0
    for i, h in enumerate(rows):
        nib |= slot_of[h] << (4 * i)
    e("s_mov_b32 s%d, 0x%x" % (S_T0, nib & 0xffffffff))
    e("s_mov_b32 s%d, 0x%x" % (S_T1, nib >> 32))
    e("v_and_b32 v%d, 15, v%d" % (V_X0, V_LANE))
    e("v_lshlrev_b32 v%d, 2, v%d" % (V_X0, V_X0))
    e("v_lshrrev_b64 v[%d:%d], v%d, s[%d:%d]" % (TT, TT + 1, V_X0, S_T0, S_T1))
    e("v_and_b32 v%d, 15, v%d" % (V_X0, TT))
    e("v_mul_u32_u24 v%d, %d, v%d" % (VT_R2, TROW, V_X0))
    e("v_lshl_add_u32 v%d, v%d, 4, v%d" % (VT_R2, V_X1, VT_R2))
    e("v_add_u32 v%d, s%d, v%d" % (VT_R2, S_LB, VT_R2))
    for h in range(8, 17):
        cmul(e, H(dst, 0), H(src, 0), w128)
        put(H(dst, 0), slot_of[h])
        src, dst = dst, src
        if h == 10:
            e.wait_lg("t1")
            mfmas(T1, True)
    read_frags(AF, VT_R2, "t2")
    Z = 120
    for i in range(4):
        e("v_mov_b32 v%d, 0" % (Z + i))
    e("v_and_b32 v%d, 31, v%d" % (V_X0, V_LANE))
    e("v_min_u32 v%d, 28, v%d" % (V_X0, V_X0))
    e("v_lshlrev_b32 v%d, 4, v%d" % (V_X0, V_X0))
    e("v_lshrrev_b32 v%d, 5, v%d" % (V_X2, V_LANE))
    e("v_mul_u32_u24 v%d, %d, v%d" % (V_X2, KC0, V_X2))
    e("v_add3_u32 v%d, v%d, v%d, s%d" % (V_X0, V_X0, V_X2, S_LB))
    e.lds("ds_write_b128 v%d, %s" % (V_X0, vr(Z, 4)))
    e.wait_lg("t2")
    mfmas(T2, True)
    mid_hook()
    stamp(e, cfg, 2)
    XA = 124
    XB = 125
    N = 126
    C = 132
    e("v_and_b32 v%d, 15, v%d" % (V_X0, V_LANE))
    e("v_lshlrev_b32 v%d, 4, v%d" % (XA, V_X0))
    e("v_add_u32 v%d, s%d, v%d" % (XA, S_LB, XA))
    e("v_lshl_add_u32 v%d, v%d, 9, v%d" % (XB, V_X1, XA))
    e("v_and_b32 v%d, 1, v%d" % (V_X2, V_LANE))
    e("v_cmp_eq_u32 vcc, 1, v%d" % V_X2)

    def nxt(n, a, b):
        e("v_mov_b32_dpp v%d, v%d row_ror:15 row_mask:0xf bank_mask:0xf" % (n, b))
        e("s_nop 1")
        e("v_mov_b32_dpp v%d, v%d row_shl:1 row_mask:0xf bank_mask:0xf" % (n, a))

    def pk(d, lo, hi):
        e("v_cvt_pk_bf16_f32 v%d, v%d, v%d" % (d, lo, hi))

    e("s_nop 4")
    for z in range(2):
        v0 = T2 + z
        n0 = N + z
        nxt(n0, v0, T2 + z + 1)
        s = N + 2 + z
        e("v_cndmask_b32 v%d, v%d, v%d, vcc" % (s, v0, n0))
        c1 = C + 8 * z
        c0 = c1 + 4
        pk(c1, v0, v0); pk(c1 + 1, v0, v0); pk(c1 + 2, s, n0); pk(c1 + 3, n0, n0)
        pk(c0, v0, v0); pk(c0 + 1, v0, v0); pk(c0 + 2, v0, s); pk(c0 + 3, n0, n0)
        e.lds("ds_write_b128 v%d, %s offset:%d" % (XB, vr(c1, 4), KC1 + 448 + 256 * (8 + z)))
        e.lds("ds_write_b128 v%d, %s offset:%d" % (XB, vr(c0, 4), KC0 + 448 + 256 * (8 + z)))
    a, b, c, d = T1, T1 + 1, T1 + 2, T1 + 3
    C2 = C + 16
    nxt(N, a, T2 + 3)
    nxt(N + 1, a, c)
    nxt(N + 2, c, T2 + 3)
    e("v_lshl_add_u32 v%d, v%d, 8, v%d" % (V_X2, V_X1, XA))
    e("s_mov_b32 exec_hi, 0")
    pk(C2, a, a); pk(C2 + 1, b, c); pk(C2 + 2, c, c); pk(C2 + 3, d, N)
    pk(C2 + 4, a, a); pk(C2 + 5, a, b); pk(C2 + 6, c, c); pk(C2 + 7, c, d)
    e.lds("ds_write_b128 v%d, %s offset:%d" % (V_X2, vr(C2, 4), KC1 + 448 + 512))
    e.lds("ds_write_b128 v%d, %s offset:%d" % (V_X2, vr(C2 + 4, 4), KC0 + 448 + 512))
    e("s_not_b64 exec, exec")
    C3 = C2 + 8
    for z, (x0, x4, nn) in enumerate(((a, b, N + 1), (c, d, N + 2))):
        c1 = C3 + 8 * z
        c0 = c1 + 4
        pk(c1, x0, x0); pk(c1 + 1, x0, x4); pk(c1 + 2, x4, x4); pk(c1 + 3, nn, nn)
        pk(c0, x0, x0); pk(c0 + 1, x0, x0); pk(c0 + 2, x4, x4); pk(c0 + 3, x4, nn)
        e.lds("ds_write_b128 v%d, %s offset:%d" % (XB, vr(c1, 4), KC1 + 448 + 256 * z))
        e.lds("ds_write_b128 v%d, %s offset:%d" % (XB, vr(c0, 4), KC0 + 448 + 256 * z))
    e("s_mov_b64 exec, -1")
    C4 = C3 + 16
    e("v_lshrrev_b32 v%d, 5, v%d" % (V_X2, V_LANE))
    e("v_lshl_add_u32 v%d, v%d, 8, v%d" % (V_X2, V_X2, XA))
    e("v_and_b32 v%d, 1, v%d" % (V_X0, V_X1))
    e("v_lshl_add_u32 v%d, v%d, 3, v%d" % (V_X2, V_X0, V_X2))
    pk(C4, T0, T0 + 1); pk(C4 + 1, T0 + 2, T0 + 3); pk(C4 + 2, T0 + 1, T0 + 2)
    e.lds("ds_write_b64 v%d, %s offset:%d" % (V_X2, vr(C4, 2), KC1 + 448))
    e.lds("ds_write_b16 v%d, v%d offset:%d" % (V_X2, C4, KC0 + 450))
    e.lds("ds_write_b32 v%d, v%d offset:%d" % (V_X2, C4 + 2, KC0 + 452))
    e.lds("ds_write_b16_d16_hi v%d, v%d offset:%d" % (V_X2, C4 + 1, KC0 + 456))


def kprep_issue(e):
    KD = 160
    e("v_lshlrev_b32 v%d, 4, v%d" % (V_X0, V_LANE))
    for i in range(4):
        e.vmem("buffer_load_dwordx4 %s, v%d, %s, 0 offen offset:%d" % (vr(KD + 4 * i, 4), V_X0, srd(R_KROW), 1024 * i), "K")
    e("v_add_u32 v%d, -4, v%d" % (V_X1, V_X0))
    e("v_add_u32 v%d, 1020, v%d" % (V_X2, V_X0))
    e.vmem("buffer_load_dword v176, v%d, %s, 0 offen" % (V_X1, srd(R_KROW)), "K")
    for i in range(1, 4):
        e.vmem("buffer_load_dword v%d, v%d, %s, 0 offen offset:%d" % (176 + i, V_X2, srd(R_KROW), 1024 * (i - 1)), "K")
    e("v_lshlrev_b32 v181, 12, v%d" % V_LANE)
    e("s_lshl_b32 s%d, s%d, 1" % (S_T0, S_CH))
    e.vmem("buffer_load_ushort v180, v181, %s, s%d offen" % (srd(R_DD), S_T0), "K")
    e("v_and_b32 v182, 3, v%d" % V_LANE)
    e("v_lshlrev_b32 v182, 4, v182")
    e("s_lshl_b32 s%d, s%d, 6" % (S_T1, S_CG))
    e("v_add_u32 v182, s%d, v182" % S_T1)
    e.vmem("global_load_dwordx4 v[184:187], v182, s[%d:%d]" % (P_SHK, P_SHK + 1), "K")


def kprep_finish(e):
    KD = 160
    Z = 188
    for i in range(4):
        e("v_mov_b32 v%d, 0" % (Z + i))
    e("v_and_b32 v%d, 31, v%d" % (V_X0, V_LANE))
    e("v_min_u32 v%d, 27, v%d" % (V_X0, V_X0))
    e("v_lshlrev_b32 v%d, 4, v%d" % (V_X0, V_X0))
    e("v_lshrrev_b32 v%d, 5, v%d" % (V_X2, V_LANE))
    e("v_mul_u32_u24 v%d, %d, v%d" % (V_X2, KC0, V_X2))
    e("v_add3_u32 v%d, v%d, v%d, s%d" % (V_X0, V_X0, V_X2, S_LB))
    e.lds("ds_write_b128 v%d, %s" % (V_X0, vr(Z, 4)))
    e("v_lshlrev_b32 v%d, 4, v%d" % (V_X1, V_LANE))
    e("v_add_u32 v%d, s%d, v%d" % (V_X1, S_LB, V_X1))
    e.wait_vm("K")
    e("v_lshlrev_b32 v180, 16, v180")
    e("v_lshlrev_b32 v181, 16, v%d" % KD)
    e("v_and_b32 v182, s%d, v%d" % (S_MASK, KD))
    e("v_add_f32 v181, v181, v180")
    e("v_cvt_pk_bf16_f32 v%d, v181, v182" % KD)
    for i in range(4):
        k = KD + 4 * i
        o = 192 + 4 * i
        e("v_alignbit_b32 v%d, v%d, v%d, 16" % (o, k, 176 + i))
        for d in range(1, 4):
            e("v_alignbit_b32 v%d, v%d, v%d, 16" % (o + d, k + d, k + d - 1))
        e.lds("ds_write_b128 v%d, %s offset:%d" % (V_X1, vr(k, 4), KC1 + 448 + 1024 * i))
        e.lds("ds_write_b128 v%d, %s offset:%d" % (V_X1, vr(o, 4), KC0 + 448 + 1024 * i))
    for z in range(2):
        for d in range(2):
            e("v_lshlrev_b32 v%d, 16, v%d" % (V_W + 4 * z + 2 * d, 184 + 2 * z + d))
            e("v_and_b32 v%d, s%d, v%d" % (V_W + 4 * z + 2 * d + 1, S_MASK, 184 + 2 * z + d))


def setup_col(e):
    e("v_lshrrev_b32 v%d, 2, v%d" % (V_X0, V_LANE))
    e("v_lshlrev_b32 v%d, 14, v%d" % (V_COL, V_X0))
    e("v_and_b32 v%d, 3, v%d" % (V_X1, V_LANE))
    e("v_lshl_add_u32 v%d, v%d, 2, v%d" % (V_COL, V_X1, V_COL))
    e("s_lshl_b32 s%d, s%d, 18" % (S_T0, S_W))
    e("s_lshl_b32 s%d, s%d, 4" % (S_T1, S_CG))
    e("s_add_u32 s%d, s%d, s%d" % (S_T0, S_T0, S_T1))
    e("v_add_u32 v%d, s%d, v%d" % (V_COL, S_T0, V_COL))


def setup_halo(e):
    e("v_subrev_u32 v%d, 6144, v%d" % (V_HALO, V_COL))
    e("v_ashrrev_i32 v%d, 31, v%d" % (V_X2, V_HALO))
    e("v_and_b32 v%d, 0x7fffffff, v%d" % (V_HALO, V_HALO))
    e("v_lshrrev_b32 v%d, 2, v%d" % (V_X2, V_X2))
    e("v_and_b32 v%d, 0x10000000, v%d" % (V_X2, V_X2))
    e("v_sub_u32 v%d, v%d, v%d" % (V_HALO, V_HALO, V_X2))
    e("v_add_u32 v%d, 0x1fe800, v%d" % (V_HALO2, V_COL))


def setup_rest(e, typ):
    L = V_LANE
    e("v_and_b32 v%d, 1, v%d" % (V_X0, L))
    e("v_xor_b32 v%d, 1, v%d" % (V_X0, V_X0))
    e("v_mul_u32_u24 v%d, %d, v%d" % (V_A, KC0, V_X0))
    e("v_bfe_u32 v%d, v%d, 1, 3" % (V_X1, L))
    e("v_lshl_add_u32 v%d, v%d, 6, v%d" % (V_A, V_X1, V_A))
    e("v_lshrrev_b32 v%d, 4, v%d" % (V_X2, L))
    e("v_lshlrev_b32 v%d, 4, v%d" % (V_X2, V_X2))
    e("v_add3_u32 v%d, v%d, v%d, s%d" % (V_A, V_A, V_X2, S_LB))
    e("s_lshl_b32 s%d, s%d, 2" % (S_T0, S_W))
    e("s_and_b32 s%d, s%d, 8" % (S_T0, S_T0))
    e("s_add_u32 s%d, s%d, %d" % (S_T0, S_T0, UC0 - UC1))
    e("v_mul_u32_u24 v%d, s%d, v%d" % (V_B, S_T0, V_X0))
    e("v_lshlrev_b32 v%d, 3, v%d" % (V_X1, V_X1))
    e("v_sub_u32 v%d, v%d, v%d" % (V_B, V_B, V_X1))
    e("s_add_u32 s%d, s%d, %d" % (S_T1, S_LB, UC1))
    e("v_add3_u32 v%d, v%d, v%d, s%d" % (V_B, V_B, V_X2, S_T1))
    e("v_and_b32 v%d, 31, v%d" % (V_X0, L))
    e("v_min_u32 v%d, 14, v%d" % (V_X0, V_X0))
    e("v_lshlrev_b32 v%d, 2, v%d" % (V_X0, V_X0))
    e("v_lshrrev_b32 v%d, 5, v%d" % (V_X1, L))
    e("s_add_u32 s%d, s%d, -4" % (S_T0, S_T0))
    e("v_mul_u32_u24 v%d, s%d, v%d" % (V_X1, S_T0, V_X1))
    e("v_add3_u32 v%d, v%d, v%d, s%d" % (V_X0, V_X0, V_X1, S_T1))
    e("v_mov_b32 v%d, 0" % V_X1)
    e.lds("ds_write_b32 v%d, v%d offset:4096" % (V_X0, V_X1))
    e("s_mul_i32 s%d, s%d, %d" % (S_T0, S_W, YCS))
    e("s_add_u32 s%d, s%d, %d" % (S_T0, S_T0, YST))
    e("v_lshlrev_b32 v%d, 3, v%d" % (V_YW, L))
    e("v_add_u32 v%d, s%d, v%d" % (V_YW, S_T0, V_YW))
    e("v_bfe_u32 v%d, v%d, 2, 2" % (V_X0, L))
    e("v_mul_u32_u24 v%d, %d, v%d" % (V_YR, YCS, V_X0))
    e("v_lshl_add_u32 v%d, v%d, 1, v%d" % (V_YR, V_X2, V_YR))
    e("v_and_b32 v%d, 3, v%d" % (V_X0, L))
    e("v_lshl_add_u32 v%d, v%d, 3, v%d" % (V_YR, V_X0, V_YR))
    e("s_lshl_b32 s%d, s%d, 7" % (S_T0, S_W))
    e("s_add_u32 s%d, s%d, %d" % (S_T0, S_T0, YST))
    e("v_add_u32 v%d, s%d, v%d" % (V_YR, S_T0, V_YR))
    e("v_mul_u32_u24 v%d, %d, v%d" % (V_U1, 2 * CS, V_X0))
    e("v_lshrrev_b32 v%d, 2, v%d" % (V_X1, L))
    e("v_lshlrev_b32 v%d, 4, v%d" % (V_X1, V_X1))
    e("v_sub_u32 v%d, v%d, v%d" % (V_U1, V_U1, V_X1))
    e("s_lshl_b32 s%d, s%d, 8" % (S_T0, S_W))
    e("s_sub_u32 s%d, %d, s%d" % (S_T0, UC1 + 4080 - 2048, S_T0))
    e("v_add_u32 v%d, s%d, v%d" % (V_U1, S_T0, V_U1))
    e("v_and_b32 v%d, 1, v%d" % (V_X0, L))
    e("v_lshl_add_u32 v%d, v%d, 3, v%d" % (V_U0A, V_X0, V_U1))
    e("v_add_u32 v%d, %d, v%d" % (V_U0A, UC0 - UC1 - 4, V_U0A))
    e("v_add_u32 v%d, %d, v%d" % (V_U0B, CS, V_U0A))
    e("v_lshrrev_b32 v%d, 2, v%d" % (V_X1, L))
    e("v_lshl_add_u32 v%d, v%d, 1, v%d" % (V_X0, V_X1, V_X0))
    e("v_bfe_u32 v%d, v%d, 1, 1" % (V_X1, L))
    e("v_lshl_add_u32 v%d, v%d, 5, v%d" % (V_X0, V_X1, V_X0))
    e("s_lshl_b32 s%d, s%d, 6" % (S_T0, S_W))
    e("v_add_u32 v%d, s%d, v%d" % (V_X0, S_T0, V_X0))
    e("s_lshl_b32 s%d, s%d, 4" % (S_T1, S_CG))
    if typ == "B":
        e("v_lshlrev_b32 v%d, 11, v%d" % (V_QO, V_X0))
        e("v_add_u32 v%d, s%d, v%d" % (V_QO, S_T1, V_QO))
        e("s_add_u32 s%d, s%d, 2048" % (S_T1, S_T1))
    e("v_lshlrev_b32 v%d, 12, v%d" % (V_OO, V_X0))
    e("v_add_u32 v%d, s%d, v%d" % (V_OO, S_T1, V_OO))


def body(e, typ, G, cfg):
    st = ConvState()
    proc = process_B if typ == "B" else process_A

    def M(ph):
        stamp(e, cfg, 10 + 4 * ph)
        conv_phase(e, st, ph, cfg)
        stamp(e, cfg, 11 + 4 * ph)

    def bar(i):
        stamp(e, cfg, 30 + i)
        e.barrier()

    if G == 0:
        if typ == "B":
            e.wait_vm("D1st")
            stamp(e, cfg, 3)
            proc(e, False)
            issue_set_B(e, True, "D2nd")
            bar(0)
        M(0)
        e.wait_vm("D2nd")
        stamp(e, cfg, 4)
        proc(e, True)
        if typ == "B":
            for ph in range(4):
                issue_q(e, ph)
        bar(1)
        M(1)
        epilogue(e, typ, 0)
        bar(2)
        M(2)
        epilogue(e, typ, 1)
        bar(3)
        M(3)
        epilogue(e, typ, 2)
        bar(4)
        epilogue(e, typ, 3)
    else:
        if typ == "B":
            bar(0)
            e.wait_vm("D1st")
            stamp(e, cfg, 3)
            proc(e, False)
            issue_q(e, 0)
            issue_set_B(e, True, "D2nd")
        M(0)
        bar(1)
        epilogue(e, typ, 0)
        e.wait_vm("D2nd")
        stamp(e, cfg, 4)
        proc(e, True)
        if typ == "B":
            for ph in range(1, 4):
                issue_q(e, ph)
        M(1)
        bar(2)
        epilogue(e, typ, 1)
        M(2)
        bar(3)
        epilogue(e, typ, 2)
        M(3)
        bar(4)
        epilogue(e, typ, 3)
    if cfg.stamps:
        stamp(e, cfg, 40)
        e("s_waitcnt vmcnt(0)")
        stamp(e, cfg, 41)
    stamp_flush(e, cfg)
    e("s_endpgm")


def generate(cfg):
    e = Em()
    e("s_cmp_ge_u32 s2, 256")
    e("s_cbranch_scc1 L_exit")
    e("s_load_dwordx16 s[16:31], s[0:1], 0")
    e("s_load_dwordx16 s[32:47], s[0:1], 64")
    if cfg.stamps:
        e("s_load_dwordx2 s[94:95], s[0:1], 136")
        e("s_memrealtime s[96:97]")
        e("s_memtime s[98:99]")
    e("v_lshrrev_b32 v%d, 6, v0" % V_X0)
    e("v_and_b32 v0, 63, v0")
    e("v_readfirstlane_b32 s%d, v%d" % (S_W, V_X0))
    e("s_and_b32 s%d, s2, 7" % S_T0)
    e("s_lshl_b32 s%d, s%d, 4" % (S_T0, S_T0))
    e("s_bfe_u32 s%d, s2, 0x40003" % S_T1)
    e("s_add_u32 s%d, s%d, s%d" % (S_CG, S_T0, S_T1))
    e("s_lshl_b32 s%d, s%d, 3" % (S_CH, S_CG))
    e("s_add_u32 s%d, s%d, s%d" % (S_CH, S_CH, S_W))
    e("s_mul_i32 s%d, s%d, %d" % (S_LB, S_W, CS))
    for i in range(1, 4):
        e("s_mov_b32 s%d, %d" % (S_ROW[i], 4096 * i))
    for i in range(4):
        e("s_mov_b32 s%d, 0x%x" % (S_ROW2[i], 0x200000 + 4096 * i))
    e("s_mov_b32 s%d, 0x100000" % S_1M)
    e("s_mov_b32 s%d, 0x300000" % S_3M)
    e("s_mov_b32 s%d, 0x400000" % S_4M)
    e("s_mov_b32 s%d, 0x600000" % S_6M)
    e("s_mov_b32 s%d, 0xffff0000" % S_MASK)
    e("s_mov_b32 s%d, 0x05040100" % S_SELLO)
    e("s_mov_b32 s%d, 0x07060302" % S_SELHI)
    setup_col(e)
    e("s_cmp_ge_u32 s2, 128")
    e("s_cbranch_scc1 L_B")
    head = e.lines
    out = list(head)
    e = Em()
    e("v_lshlrev_b32 v%d, 2, v%d" % (V_X0, V_LANE))
    e("s_lshl_b32 s%d, s%d, 8" % (S_T0, S_CH))
    e("v_add_u32 v%d, s%d, v%d" % (V_X0, S_T0, V_X0))
    e("s_lshl_b32 s%d, s%d, 1" % (S_T0, S_CH))
    e("v_mov_b32 v%d, s%d" % (V_X1, S_T0))
    e("v_lshlrev_b32 v%d, 12, v%d" % (V_X2, V_LANE))
    e("s_waitcnt lgkmcnt(0)")
    if cfg.stamps:
        e("v_mov_b32 v%d, 0" % V_TSV)
        e("v_writelane_b32 v%d, s96, 62" % V_TSV)
        e("v_writelane_b32 v%d, s98, 0" % V_TSV)
    mk_srd(e, R_DD, P_DSK, 2048)
    e.vmem("global_load_ushort v66, v%d, s[%d:%d]" % (V_X1, P_LDT, P_LDT + 1), "par")
    for i, p in enumerate((P_ARE, P_AIM, P_BRE, P_BIM, P_CRE, P_CIM)):
        e.vmem("global_load_dword v%d, v%d, s[%d:%d]" % (60 + i, V_X0, p, p + 1), "par")
    e.vmem("buffer_load_ushort v67, v%d, %s, s%d offen" % (V_X2, srd(R_DD), S_T0), "par")
    mk_srd(e, R_D0, P_U, 0x400000)
    issue_set_A(e, False, "D1st")
    issue_set_A(e, True, "D2nd")
    mk_srd(e, R_OUT, P_OUT, 0x800000)
    setup_rest(e, "A")

    def hook():
        e.wait_vm("D1st")
        process_A(e, False)
        stamp(e, cfg, 30)
        e.barrier()
    kgen(e, cfg, hook)
    e("s_cmp_ge_u32 s%d, 4" % S_W)
    e("s_cbranch_scc1 L_A1")
    out += e.lines
    for G in range(2):
        f = Em()
        f.vm = list(e.vm)
        f.lg = list(e.lg)
        if G:
            f.label("L_A1")
        body(f, "A", G, cfg)
        out += f.lines
    e = Em()
    e.label("L_B")
    setup_halo(e)
    e("s_lshl_b32 s%d, s%d, 12" % (S_T0, S_CH))
    e("s_waitcnt lgkmcnt(0)")
    if cfg.stamps:
        e("v_mov_b32 v%d, 0" % V_TSV)
        e("v_writelane_b32 v%d, s96, 62" % V_TSV)
        e("v_writelane_b32 v%d, s98, 0" % V_TSV)
    mk_srd(e, R_D0, P_K, 0x400000)
    mk_srd(e, R_V, P_V, 0x400000)
    e("s_add_u32 s%d, s%d, s%d" % (R_KROW, P_SSK, S_T0))
    e("s_addc_u32 s%d, s%d, 0" % (R_KROW + 1, P_SSK + 1))
    e("s_mov_b32 s%d, 4096" % (R_KROW + 2))
    e("s_mov_b32 s%d, 0x20000" % (R_KROW + 3))
    mk_srd(e, R_DD, P_SSD, 2048)
    mk_srd(e, R_Q, P_Q, 0x400000)
    mk_srd(e, R_OUT, P_OUT, 0x800000)
    e("s_cmp_ge_u32 s%d, 4" % S_W)
    e("s_cbranch_scc1 L_B1")
    out += e.lines
    for G in range(2):
        f = Em()
        if G:
            f.label("L_B1")
            kprep_issue(f)
            setup_rest(f, "B")
            kprep_finish(f)
            stamp(f, cfg, 1)
            issue_set_B(f, False, "D1st")
        else:
            kprep_issue(f)
            issue_set_B(f, False, "D1st")
            setup_rest(f, "B")
            kprep_finish(f)
            stamp(f, cfg, 1)
        body(f, "B", G, cfg)
        out += f.lines
    out.append("L_exit:")
    out.append("    s_endpgm")
    return out


def main():
    ap = argparse.ArgumentParser()
    ap.add_argument("-o", default="cdna_kernels/%s.s" % NAME)
    ap.add_argument("--stamps", action="store_true")
    ap.add_argument("--maxlg", type=int, default=12)
    cfg = ap.parse_args()
    ref = open("cdna_kernels/%s.s.ref" % NAME).read().splitlines()
    hdr = [l for l in ref if l.startswith(";") and "@launch" not in l]
    txt = hdr + ["; @launch grid=(256,1,1) block=(512,1,1) lds=%d" % LDS_TOTAL,
                 '.amdgcn_target "amdgcn-amd-amdhsa--gfx950"', ".text",
                 ".globl %s_kernel" % NAME, ".p2align 8", ".type %s_kernel,@function" % NAME,
                 "%s_kernel:" % NAME]
    txt += generate(cfg)
    txt += ['.section .rodata,"a"', ".p2align 6", ".amdhsa_kernel %s_kernel" % NAME,
            "  .amdhsa_next_free_vgpr 256", "  .amdhsa_next_free_sgpr 102", "  .amdhsa_accum_offset 256",
            "  .amdhsa_group_segment_fixed_size 0", "  .amdhsa_kernarg_size 144", "  .amdhsa_user_sgpr_count 2",
            "  .amdhsa_user_sgpr_kernarg_segment_ptr 1", "  .amdhsa_system_sgpr_workgroup_id_x 1",
            ".end_amdhsa_kernel"]
    open(cfg.o, "w").write("\n".join(txt) + "\n")


if __name__ == "__main__":
    main()
```

```python
import sys
NAME="concat_heads__ssm_conv_s4__ssm_conv_h3__prompt"
src,out,wglo,wghi,wlo,whi,i1,i0,mult=sys.argv[1],sys.argv[2],*map(int,sys.argv[3:10])
s=open(src).read()
L=[l for l in s.splitlines() if '@launch' in l][0]
lds=L.split('lds=')[1]
real="; @launch kernel=%s_kernel grid=(256,1,1) block=(512,1,1) lds=%s"%(NAME,lds)
code=f""".p2align 8
.globl spin_kernel
.type spin_kernel,@function
spin_kernel:
    s_cmp_lt_u32 s2, {wglo}
    s_cbranch_scc1 L_sp_exit
    s_cmp_ge_u32 s2, {wghi}
    s_cbranch_scc1 L_sp_exit
    s_load_dwordx2 s[4:5], s[0:1], 136
    s_memrealtime s[10:11]
    v_lshrrev_b32 v1, 6, v0
    s_nop 1
    v_readfirstlane_b32 s3, v1
    s_nop 3
    s_cmp_lt_u32 s3, {wlo}
    s_cbranch_scc1 L_sp_exit
    s_cmp_ge_u32 s3, {whi}
    s_cbranch_scc1 L_sp_exit
    s_lshl_b32 s6, s2, 3
    s_add_u32 s6, s6, s3
    s_lshl_b32 s6, s6, 8
    s_add_u32 s6, s6, 0x400000
    s_waitcnt lgkmcnt(0)
    s_add_u32 s4, s4, s6
    s_addc_u32 s5, s5, 0
    s_load_dword s8, s[4:5], {4*i1}
    s_load_dword s9, s[4:5], {4*i0}
    s_waitcnt lgkmcnt(0)
    s_sub_u32 s8, s8, s9
    s_min_u32 s8, s8, 100000
    s_mul_i32 s8, s8, {mult}
    s_min_u32 s8, s8, 200000
L_sp_loop:
    s_sleep 4
    s_memrealtime s[12:13]
    s_waitcnt lgkmcnt(0)
    s_sub_u32 s14, s12, s10
    s_cmp_lt_u32 s14, s8
    s_cbranch_scc1 L_sp_loop
L_sp_exit:
    s_endpgm
"""
kd=""".p2align 6
.amdhsa_kernel spin_kernel
  .amdhsa_next_free_vgpr 8
  .amdhsa_next_free_sgpr 32
  .amdhsa_accum_offset 8
  .amdhsa_group_segment_fixed_size 0
  .amdhsa_kernarg_size 144
  .amdhsa_user_sgpr_count 2
  .amdhsa_user_sgpr_kernarg_segment_ptr 1
  .amdhsa_system_sgpr_workgroup_id_x 1
.end_amdhsa_kernel
"""
t=s.replace(L,real+"\n; @launch kernel=spin_kernel grid=(256,1,1) block=(512,1,1) lds=0")
t=t.replace('.section .rodata,"a"', code+'.section .rodata,"a"')+kd
open(out,'w').write(t)
```

```python
import sys, argparse

NAME = "concat_heads__ssm_conv_s4__ssm_conv_h3__prompt"

KS  = 9120
KC1 = 0
KC0 = 4576
UC1 = 8 * KS
UD  = 4224
UC0 = UC1 + UD
CS  = 8400
YST = UC1 + 8 * CS
YCS = 1088
YBUF = 8 * YCS
FLG = YST + 2 * YBUF
LDS_TOTAL = FLG + 32
TROW = 544

S_H, S_ROT, S_XCD, S_PC = 3, 4, 5, 6
P_U, P_ARE, P_AIM, P_BRE, P_BIM, P_CRE, P_CIM, P_LDT = 16, 18, 20, 22, 24, 26, 28, 30
P_DSK, P_Q, P_K, P_V, P_SHK, P_SSK, P_SSD, P_OUT = 32, 34, 36, 38, 40, 42, 44, 46
R_D0, R_V, R_Q, R_OUT, R_KROW, R_DD = 48, 52, 56, 60, 64, 68
R_PK = 92
S_ROW = [None, 72, 73, 74]
S_1M, S_2M, S_3M, S_4M, S_6M = 75, 76, 77, 78, 79
S_W, S_CG, S_CH, S_T0, S_T1, S_SELLO, S_SELHI, S_MASK, S_LB = 83, 84, 85, 86, 87, 88, 89, 90, 91
STAMP_REGS = [8, 10, 12, 14, 80, 100] + list(range(16, 48, 2))
MB = {0: "0", 1: "s%d" % S_1M, 2: "s%d" % S_2M, 3: "s%d" % S_3M, 4: "s%d" % S_4M, 6: "s%d" % S_6M}

V_LANE = 0
V_X0, V_X1, V_X2 = 1, 2, 3
V_PF = 4
V_FA, V_FW = 5, 6
V_A, V_B, V_YW, V_YW2 = 7, 8, 9, 10
V_FL = 12
V_YT = 16
V_RING = 20
NRING = 11
V_ACC = 64
V_AC = 128
NCACHE = 2
V_U1, V_U0A, V_U0B, V_YR, V_YR2 = 7, 8, 9, 10, 11
V_COL = 16
V_HALO = 20
V_QO, V_OO = 24, 26
V_DA = 28
V_W = 28
V_DB = 36
V_Q = 112
V_TB = 144
PF16, PF32, PFS = 20, 21, 22


class Em:
    def __init__(self):
        self.lines = []
        self.vm = []
        self.lg = []
        self.stamps = []
        self.extras = []
        self.xstep = 6
        self._cnt = 0

    def fork(self):
        f = Em()
        f.vm = list(self.vm)
        f.lg = list(self.lg)
        f.stamps = list(self.stamps)
        return f

    def __call__(self, s):
        self.lines.append("    " + s)
        if self.extras and s.startswith("v_") and not s.startswith("v_mfma"):
            self._cnt += 1
            if self._cnt >= self.xstep:
                self._cnt = 0
                x = self.extras.pop(0)
                ex, self.extras = self.extras, []
                x()
                self.extras = ex

    def flush_extras(self):
        ex, self.extras = self.extras, []
        for x in ex:
            x()

    def cut(self, lab):
        self("s_branch %s" % lab)
        self.lines.append("@CUT")
        self.label(lab)

    def label(self, s):
        self.lines.append(s + ":")

    def vmem(self, s, tag):
        self(s)
        self.vm.append(tag)

    def lds(self, s, tag=None):
        self(s)
        self.lg.append(tag)

    def _need(self, q, tags):
        idx = -1
        for i, t in enumerate(q):
            if t in tags:
                idx = i
        return idx

    def wait_vm(self, *tags):
        idx = self._need(self.vm, tags)
        if idx < 0:
            return
        n = len(self.vm) - 1 - idx
        assert n <= 63
        self("s_waitcnt vmcnt(%d)" % n)
        self.vm = self.vm[idx + 1:]

    def wait_lg(self, *tags):
        idx = self._need(self.lg, tags)
        if idx < 0:
            return False
        n = len(self.lg) - 1 - idx
        n = min(n, 15)
        self("s_waitcnt lgkmcnt(%d)" % n)
        self.lg = self.lg[len(self.lg) - n:] if n else []
        return True

    def wait_lg_all(self):
        if self.lg:
            self("s_waitcnt lgkmcnt(0)")
        self.lg = []

    def barrier(self):
        self.wait_lg_all()
        self("s_barrier")


_lab = [0]


def newlab(p):
    _lab[0] += 1
    return "%s%d" % (p, _lab[0])


def vr(b, n):
    return "v[%d:%d]" % (b, b + n - 1)


def srd(b):
    return "s[%d:%d]" % (b, b + 3)


def stamp(e, cfg, idx):
    if not cfg.stamps or len(e.stamps) >= len(STAMP_REGS):
        return
    r = STAMP_REGS[len(e.stamps)]
    e.stamps.append((idx, r))
    e("s_memtime s[%d:%d]" % (r, r + 1))


def finish(e, cfg):
    if cfg.stamps:
        stamp(e, cfg, 40)
        e("s_waitcnt vmcnt(0)")
        stamp(e, cfg, 41)
        T = V_FL
        e("s_memrealtime s[6:7]")
        e("s_load_dwordx2 s[0:1], s[0:1], 136")
        e("v_mov_b32 v%d, 0" % T)
        e("s_waitcnt lgkmcnt(0)")
        e("v_writelane_b32 v%d, s6, 63" % T)
        e("v_writelane_b32 v%d, s96, 62" % T)
        e("v_writelane_b32 v%d, s98, 0" % T)
        for idx, r in e.stamps:
            e("v_writelane_b32 v%d, s%d, %d" % (T, r, idx))
        e("s_lshl_b32 s%d, s2, 3" % S_T0)
        e("s_add_u32 s%d, s%d, s%d" % (S_T0, S_T0, S_W))
        e("s_lshl_b32 s%d, s%d, 8" % (S_T0, S_T0))
        e("v_lshlrev_b32 v%d, 2, v%d" % (V_X0, V_LANE))
        e("v_add_u32 v%d, s%d, v%d" % (V_X0, S_T0, V_X0))
        e("global_store_dword v%d, v%d, s[0:1]" % (V_X0, T))
    e("s_endpgm")


def srd_tail(e, r, nbytes):
    e("s_mov_b32 s%d, 0x%x" % (r + 2, nbytes))
    e("s_mov_b32 s%d, 0x20000" % (r + 3))


def srd_head(e, r, p):
    e("s_mov_b64 s[%d:%d], s[%d:%d]" % (r, r + 1, p, p + 1))


def unpack(e, dst, src, z):
    if z == 0:
        e("v_lshlrev_b32 v%d, 16, v%d" % (dst, src))
    else:
        e("v_and_b32 v%d, s%d, v%d" % (dst, S_MASK, src))


def flag_set(e, val):
    e("v_mov_b32 v%d, %d" % (V_X2, val))
    e.lds("ds_write_b32 v%d, v%d" % (V_FW, V_X2))


def flag_read(e):
    e.lds("ds_read_b128 %s, v%d" % (vr(V_FL, 4), V_FA), "flag")


def flag_eval(e, val):
    e("v_min3_u32 v%d, v%d, v%d, v%d" % (V_FL, V_FL, V_FL + 1, V_FL + 2))
    e("v_min_u32 v%d, v%d, v%d" % (V_FL, V_FL, V_FL + 3))
    e("s_nop 0")
    e("v_readfirstlane_b32 s%d, v%d" % (S_T0, V_FL))
    e("s_cmp_ge_u32 s%d, %d" % (S_T0, val))


def flag_check(e, val, sleep):
    ex, e.extras = e.extras, []
    ok, spin = newlab("L_ok"), newlab("L_spin")
    e.wait_lg("flag")
    flag_eval(e, val)
    e("s_cbranch_scc1 %s" % ok)
    e.label(spin)
    if sleep:
        e("s_sleep %d" % sleep)
    e("ds_read_b128 %s, v%d" % (vr(V_FL, 4), V_FA))
    e("s_waitcnt lgkmcnt(0)")
    flag_eval(e, val)
    e("s_cbranch_scc0 %s" % spin)
    e.label(ok)
    e.extras = ex


def col_row(e, dst, voff, rs, row, tag):
    so = S_ROW[row >> 1]
    so = "0" if so is None else "s%d" % so
    off = " offset:2048" if row & 1 else ""
    return lambda: e.vmem("buffer_load_dword v%d, v%d, %s, %s offen%s" % (dst, voff, srd(rs), so, off), tag)


def loads_B(e, i):
    tag = "D%d" % i
    b = V_DB + 19 * i
    l = [col_row(e, b + 3 + r, V_COL + i, R_D0, r, tag) for r in range(8)]
    l += [col_row(e, b + r, V_HALO + i, R_D0, r, tag) for r in range(3)]
    l += [col_row(e, b + 11 + r, V_COL + i, R_V, r, tag) for r in range(8)]
    return l


def loads_A(e, i):
    return [col_row(e, V_DA + 8 * i + r, V_COL + i, R_D0, r, "D%d" % i) for r in range(8)]


def loads_q(e, i):
    return [(lambda z=z: e.vmem("buffer_load_dwordx4 %s, v%d, %s, %s offen" % (vr(V_Q + 8 * i + 4 * z, 4), V_QO + z, srd(R_Q), MB[i]), "q%d" % i)) for z in range(2)]


def write_u(e, out, z, i):
    adj = (3 - i) * 1024
    e.lds("ds_write_b128 v%d, %s offset:%d" % (V_U1, vr(out, 4), adj + z * CS))
    va = V_U0B if z else V_U0A
    if adj:
        e("v_add_u32 v%d, %d, v%d" % (V_X0 + z, adj, va))
        va = V_X0 + z
    e.lds("ds_write2_b32 v%d, v%d, v%d offset0:0 offset1:1" % (va, out, out + 1))
    e.lds("ds_write2_b32 v%d, v%d, v%d offset0:2 offset1:3" % (va, out + 2, out + 3))


def halo_dpp(e, DK):
    for k in range(3):
        e("v_mov_b32_dpp v%d, v%d row_shr:4 row_mask:0xf bank_mask:0xf" % (DK + k, DK + 8 + k))


def process_B(e, i):
    DK = V_DB + 19 * i
    DV = DK + 11
    halo_dpp(e, DK)
    KU = V_TB
    R = V_TB + 12
    OUT = [V_TB + 20, V_TB + 24]
    for z in range(2):
        for k in range(11):
            unpack(e, KU + k, DK + k, z)
        for t in range(8):
            e("v_mul_f32 v%d, v%d, v%d" % (R + t, KU + t, V_W + 6 + z))
        for tap in (2, 1, 0):
            for t in range(8):
                e("v_fmac_f32 v%d, v%d, v%d" % (R + t, KU + t + 3 - tap, V_W + 2 * tap + z))
        for t in range(8):
            unpack(e, KU + t, DV + t, z)
        for t in range(8):
            e("v_mul_f32 v%d, v%d, v%d" % (R + t, R + t, KU + t))
        for d in range(4):
            e("v_cvt_pk_bf16_f32 v%d, v%d, v%d" % (OUT[z] + d, R + 7 - 2 * d, R + 6 - 2 * d))
        write_u(e, OUT[z], z, i)


def process_B_pk(e, i):
    DK = V_DB + 19 * i
    DV = DK + 11
    KU = V_TB + 28
    R = V_TB + 52
    OUT = [V_TB + 20, V_TB + 24]
    halo_dpp(e, DK)
    for k in range(11):
        for z in range(2):
            unpack(e, KU + 2 * k + z, DK + k, z)
    for t in range(8):
        e("v_pk_mul_f32 %s, %s, %s" % (vr(R + 2 * t, 2), vr(KU + 2 * t, 2), vr(V_W + 6, 2)))
    for tap in (2, 1, 0):
        for t in range(8):
            e("v_pk_fma_f32 %s, %s, %s, %s" % (vr(R + 2 * t, 2), vr(KU + 2 * (t + 3 - tap), 2), vr(V_W + 2 * tap, 2), vr(R + 2 * t, 2)))
    for t in range(8):
        for z in range(2):
            unpack(e, KU + 2 * t + z, DV + t, z)
    for t in range(8):
        e("v_pk_mul_f32 %s, %s, %s" % (vr(R + 2 * t, 2), vr(R + 2 * t, 2), vr(KU + 2 * t, 2)))
    for z in range(2):
        for d in range(4):
            e("v_cvt_pk_bf16_f32 v%d, v%d, v%d" % (OUT[z] + d, R + 2 * (7 - 2 * d) + z, R + 2 * (6 - 2 * d) + z))
        write_u(e, OUT[z], z, i)


def process_A(e, i):
    base = V_DA + 8 * i
    OUT = [60, 64]
    for z in range(2):
        sel = S_SELHI if z else S_SELLO
        for d in range(4):
            e("v_perm_b32 v%d, v%d, v%d, s%d" % (OUT[z] + d, base + 6 - 2 * d, base + 7 - 2 * d, sel))
        write_u(e, OUT[z], z, i)


def epilogue(e, typ, i, zs=(0, 1)):
    TB = V_TB if typ == "B" else 60
    Y = [TB, TB + 4]
    T = TB + 8
    O = [TB + 24 + 8 * (i & 1), TB + 28 + 8 * (i & 1)]
    for z in zs:
        dst = Y[z] if typ == "B" else O[z]
        if i < 2:
            va, off, cs = V_YR, i * YBUF + 512 * z, YCS
        else:
            va, off, cs = V_YR2, (i - 2) * UD + 512 * z, CS
        e.lds("ds_read_b64_tr_b16 %s, v%d offset:%d" % (vr(dst, 2), va, off), "y%d" % z)
        e.lds("ds_read_b64_tr_b16 %s, v%d offset:%d" % (vr(dst + 2, 2), va, off + 4 * cs), "y%d" % z)
    for z in zs:
        if typ == "B":
            e.wait_vm("q%d" % i)
            q = V_Q + 8 * i + 4 * z
            for d in range(4):
                for x in range(2):
                    unpack(e, T + 2 * d + x, q + d, x)
            e.wait_lg("y%d" % z)
            for d in range(4):
                for x in range(2):
                    unpack(e, T + 8 + 2 * d + x, Y[z] + d, x)
            for k in range(8):
                e("v_mul_f32 v%d, v%d, v%d" % (T + k, T + k, T + 8 + k))
            for d in range(4):
                e("v_cvt_pk_bf16_f32 v%d, v%d, v%d" % (O[z] + d, T + 2 * d, T + 2 * d + 1))
        else:
            e.wait_lg("y%d" % z)
        e.vmem("buffer_store_dwordx4 %s, v%d, %s, %s offen" % (vr(O[z], 4), V_OO + z, srd(R_OUT), MB[2 * i]), "st")


def conv(e, cfg, prog, preloaded):
    mf = []
    gates = {}
    yev = []
    marks = {}
    for k, it in enumerate(prog):
        if it[0] == "pass":
            _, c, pairs, gate = it
            marks[len(mf)] = k
            pairs = sorted(pairs, key=lambda pr: (pr[0] - pr[1], pr[1]))
            for s in range(8):
                for (p, r) in pairs:
                    q = p - r
                    a = ("C", c, q, s) if q < NCACHE else ("A", c, q, s, k)
                    b = ("B", c, r, s, k)
                    for f in (a, b):
                        gates.setdefault(f, gate)
                    mf.append((c, p, a, b))
        else:
            _, c, tiles, fv = it
            last = max(n for n, m in enumerate(mf) if m[0] == c and m[1] in tiles)
            yev.append([last, c, tiles, fv])
    reg, last_use, first_use, order = {}, {}, {}, []
    for n, (c, p, a, b) in enumerate(mf):
        for f in (b, a):
            last_use[f] = n
            if f not in first_use:
                first_use[f] = n
                if f[0] == "C":
                    reg[f] = V_AC + 64 * f[1] + 4 * (f[2] * 8 + f[3])
                    if f in preloaded:
                        continue
                order.append((f, 0))
                if f[0] == "B":
                    order.append((f, 1))
    slot_free_at = [-1] * NRING
    st = {"nxt": 0, "seen": 0, "flagpend": None}
    when = []
    issued_at = {}

    def lds(text, tag, n):
        e.lds(text, tag)
        when.append(n)

    def sync_when():
        del when[:max(0, len(when) - len(e.lg))]
        while len(when) < len(e.lg):
            when.insert(0, -100)

    def try_issue(done, force=False):
        if st["nxt"] >= len(order):
            return 0
        f, h = order[st["nxt"]]
        if gates[f] > st["seen"]:
            return 0
        if not force and len(e.lg) + 1 > cfg.maxlg:
            return 0
        if f[0] != "C" and h == 0:
            cand = [i for i in range(NRING) if slot_free_at[i] < done]
            if not cand:
                assert not force, "ring too small"
                return 0
            i = min(cand, key=lambda i: slot_free_at[i])
            slot_free_at[i] = last_use[f]
            reg[f] = V_RING + 4 * i
        c = f[1]
        if f[0] == "B":
            off = 3640 - 512 * f[2] + 64 * f[3] + 4 * CS * c + 8 * h
            lds("ds_read_b64 %s, v%d offset:%d" % (vr(reg[f] + 2 * h, 2), V_B, off), f, done)
        else:
            lds("ds_read_b128 %s, v%d offset:%d" % (vr(reg[f], 4), V_A, 64 * (8 * f[2] + f[3]) + 4 * KS * c), f, done)
        st["nxt"] += 1
        return 1

    def needs_wait(n):
        return e._need(e.lg, (mf[n][2], mf[n][3])) >= 0

    def do_wait(n):
        idx = e._need(e.lg, (mf[n][2], mf[n][3]))
        if idx < 0:
            return
        sync_when()
        while idx + 1 < len(e.lg) and when[idx + 1] <= n - cfg.lat:
            idx += 1
        k = min(15, len(e.lg) - 1 - idx)
        e("s_waitcnt lgkmcnt(%d)" % k)
        e.lg = e.lg[len(e.lg) - k:] if k else []
        sync_when()

    gvals = sorted(set(gates.values()) - {0})
    gpos = {g: min(first_use[f] for f, h in order if gates[f] == g) for g in gvals}
    acc_init = set()
    misc = []

    def ystage(c, tiles, fv, at):
        if fv is not None:
            at -= 20
        for j in range(0, len(tiles), 2):
            sub = tiles[j:j + 2]
            for z, p in enumerate(sub):
                a = V_ACC + 32 * c + 4 * p
                misc.append(("v", lambda n, z=z, a=a: e("v_cvt_pk_bf16_f32 v%d, v%d, v%d" % (V_YT + 2 * z, a, a + 1)), at))
                misc.append(("v", lambda n, z=z, a=a: e("v_cvt_pk_bf16_f32 v%d, v%d, v%d" % (V_YT + 2 * z + 1, a + 2, a + 3)), at))
            for z, p in enumerate(sub):
                i = p >> 1
                if i < 2:
                    va, off = V_YW, i * YBUF + 512 * (p & 1) + 4 * YCS * c
                else:
                    va, off = V_YW2, (i - 2) * UD + 512 * (p & 1) + 4 * CS * c
                misc.append(("ds", lambda n, z=z, va=va, off=off: lds("ds_write_b64 v%d, %s offset:%d" % (va, vr(V_YT + 2 * z, 2), off), None, n), at))
        if fv is not None:
            misc.append(("v", lambda n: e("v_mov_b32 v%d, %d" % (V_X2, fv)), at))
            misc.append(("ds", lambda n: lds("ds_write_b32 v%d, v%d" % (V_FW, V_X2), None, n), at - 16))

    for n, (c, p, a, b) in enumerate(mf):
        for g in gvals:
            if g > st["seen"]:
                if st["flagpend"] is None and n >= gpos[g] - cfg.glead - 6:
                    sync_when()
                    flag_read(e)
                    when.append(n)
                    st["flagpend"] = g
                if n >= gpos[g] - cfg.glead:
                    while misc:
                        misc.pop(0)[1](n)
                    flag_check(e, g, 1)
                    sync_when()
                    st["seen"] = g
                    st["flagpend"] = None
                    if n == 0:
                        for _ in range(12):
                            try_issue(n)
                break
        if n in marks and not (cfg.kstamps and marks[n] > 4):
            stamp(e, cfg, 10 + marks[n])
        while st["nxt"] < len(order) and first_use[order[st["nxt"]][0]] <= n:
            assert try_issue(n, True)
        do_wait(n)
        acc = V_ACC + 32 * c + 4 * p
        cc = vr(acc, 4) if (c, p) in acc_init else "0"
        acc_init.add((c, p))
        e("v_mfma_f32_16x16x32_bf16 %s, %s, %s, %s" % (vr(acc, 4), vr(reg[a], 4), vr(reg[b], 4), cc))
        while yev and n >= yev[0][0] + 8:
            _, yc, tiles, fv = yev.pop(0)
            ystage(yc, tiles, fv, n)
        def urgent():
            return st["nxt"] < len(order) and first_use[order[st["nxt"]][0]] <= n + 1 + cfg.lat
        nds = 0
        other = 1 if (n + 1 < len(mf) and needs_wait(n + 1)) else 0
        if misc and misc[0][0] == "ds" and not urgent():
            misc.pop(0)[1](n + 1); nds += 1
        elif try_issue(n + 1):
            nds += 1
        if nds and urgent() and try_issue(n + 1):
            nds += 1
        while misc and misc[0][0] == "v" and nds + other < 2:
            misc.pop(0)[1](n + 1); other += 1
        if misc and misc[0][2] + 24 < n:
            misc.pop(0)[1](n + 1)
    if yev:
        gap = len(mf) - 1 - max(y[0] for y in yev)
        k = 0
        while misc:
            misc.pop(0)[1](len(mf)); k += 1
        if 7 - gap - k >= 0:
            e("s_nop %d" % (7 - gap - k))
        for _, yc, tiles, fv in yev:
            ystage(yc, tiles, fv, len(mf))
    while misc:
        misc.pop(0)[1](len(mf))


def preload_cache(e, c):
    got = set()
    for s in range(8):
        for q in range(NCACHE):
            f = ("C", c, q, s)
            e.lds("ds_read_b128 %s, v%d offset:%d" % (vr(V_AC + 64 * c + 4 * (q * 8 + s), 4), V_A, 64 * (8 * q + s) + 4 * KS * c), f)
            got.add(f)
    return got


def set_pairs(i):
    r0, r1 = 2 * i, 2 * i + 1
    allp = [(p, r0) for p in range(r0, 8)] + [(p, r1) for p in range(r1, 8)]
    comp = [x for x in allp if x[0] <= r1]
    rest = [x for x in allp if x[0] > r1]
    return allp, comp, rest


RAW0, RAW1 = 60, 176
KT0, KT1, KT2 = 248, 252, 100
KXA, KXB, KXC, KXD, KZA, KSQ, KXE = 104, 105, 106, 107, 108, 109, 110
KVR, KVD, KVR2, KVG, KVS, KVU = 112, 113, 114, 116, 117, 118
_free = [0, 1, 2, 3, 5, 6, 7, 9, 10]
SLOT_OF = {8 + i: _free[i] for i in range(9)}
SLOT_OF.update({3: 4, 4: 8, 6: 12})


def kgen_addr(e):
    rows = []
    for g in range(4):
        rows += [8 + 2 * g, 9 + 2 * g, 10 + 2 * g, [3, 4, 6, 8][g]]
    nib = 0
    for i, h in enumerate(rows):
        nib |= SLOT_OF[h] << (4 * i)
    e("s_mov_b32 m0, s%d" % S_LB)
    e("v_and_b32 v%d, 15, v%d" % (V_X0, V_LANE))
    e("v_mul_u32_u24 v%d, %d, v%d" % (KVR, TROW, V_X0))
    e("v_lshrrev_b32 v%d, 4, v%d" % (KVG, V_LANE))
    e("v_lshl_add_u32 v%d, v%d, 4, v%d" % (KVR, KVG, KVR))
    e("v_add_u32 v%d, s%d, v%d" % (KVR, S_LB, KVR))
    e("v_lshlrev_b32 v%d, 4, v%d" % (KXA, V_X0))
    e("v_add_u32 v%d, s%d, v%d" % (KXA, S_LB, KXA))
    e("s_mov_b32 s%d, 0x%x" % (S_T0, nib & 0xffffffff))
    e("s_mov_b32 s%d, 0x%x" % (S_T1, nib >> 32))
    e("v_lshlrev_b32 v%d, 2, v%d" % (V_X0, V_X0))
    e("v_lshrrev_b64 v[%d:%d], v%d, s[%d:%d]" % (KVR2, KVR2 + 1, V_X0, S_T0, S_T1))
    e("v_and_b32 v%d, 15, v%d" % (V_X0, KVR2))
    e("v_mul_u32_u24 v%d, %d, v%d" % (KVR2, TROW, V_X0))
    e("v_lshl_add_u32 v%d, v%d, 4, v%d" % (KVR2, KVG, KVR2))
    e("v_add_u32 v%d, s%d, v%d" % (KVR2, S_LB, KVR2))
    e("v_and_b32 v%d, 31, v%d" % (V_X0, V_LANE))
    e("v_min_u32 v%d, 28, v%d" % (V_X0, V_X0))
    e("v_lshlrev_b32 v%d, 4, v%d" % (V_X0, V_X0))
    e("v_lshrrev_b32 v%d, 5, v%d" % (V_X1, V_LANE))
    e("v_mul_u32_u24 v%d, %d, v%d" % (V_X2, KC0, V_X1))
    e("v_add3_u32 v%d, v%d, v%d, s%d" % (KZA, V_X0, V_X2, S_LB))
    e("v_lshl_add_u32 v%d, v%d, 9, v%d" % (KXB, KVG, KXA))
    e("v_lshl_add_u32 v%d, v%d, 8, v%d" % (KXD, V_X1, KXA))
    e("v_and_b32 v%d, 1, v%d" % (V_X0, KVG))
    e("v_lshl_add_u32 v%d, v%d, 3, v%d" % (KXD, V_X0, KXD))
    e("v_lshl_add_u32 v%d, v%d, 8, v%d" % (KXC, KVG, KXA))
    e("v_add_u32 v%d, 512, v%d" % (KXC, KXC))
    e("v_max_u32 v%d, v%d, v%d" % (KXC, KXC, KXB))
    e("v_and_b32 v%d, 1, v%d" % (V_X2, V_LANE))
    e("v_cmp_eq_u32 vcc, 1, v%d" % V_X2)
    e("s_mul_i32 s%d, s%d, %d" % (S_T0, S_H, KS))
    e("s_sub_u32 s%d, s%d, s%d" % (S_T0, S_T0, S_LB))
    e("v_mul_u32_u24 v%d, %d, v%d" % (KXE, TROW, KVG))
    e("v_add3_u32 v%d, v%d, v%d, s%d" % (KXE, KXE, KXA, S_T0))


def ktables(e, cfg, ms, RAW, tag, hooks, row0=0, tail=()):
    F = 68
    w1, w128, l1, TM = [80, 81], [82, 83], [84, 85], [86, 87]
    CF = 88
    TT = 92
    HA = 120
    LB, AF = 184, 216
    nk = 4 * len(ms)
    LD, DS = RAW + 6, RAW + 7
    e("v_mov_b32 v%d, 0x3c00" % TM[0])
    for k in range(len(ms)):
        e.lds("ds_write_addtid_b32 v%d offset:%d" % (TM[0], 256 * k))
    e.wait_vm(tag)
    stamp(e, cfg, 1 if row0 == 0 else 4)
    e("v_lshlrev_b32 v%d, 16, v%d" % (LD, LD))
    e("v_mul_f32 v%d, 0x3fb8aa3b, v%d" % (LD, LD))
    e("v_exp_f32 v%d, v%d" % (LD, LD))
    for p in range(2):
        for m in ms:
            unpack(e, F + 2 * p + m, RAW + p, m)
    e("v_cvt_pk_bf16_f32 v%d, v%d, v%d" % (LD, LD, LD))
    e("v_and_b32 v%d, s%d, v%d" % (KVU, S_MASK, LD))
    e("v_lshlrev_b32 v%d, 16, v%d" % (KVD, DS))
    e("v_mul_f32 v%d, 0x3fb8aa3b, v%d" % (LD, KVU))
    e("v_mul_f32 v%d, 0.15915494, v%d" % (DS, KVU))
    for m in ms:
        e("v_mul_f32 v%d, v%d, v%d" % (F + m, LD, F + m))
        e("v_mul_f32 v%d, v%d, v%d" % (F + 2 + m, DS, F + 2 + m))

    def direct(mult, dst, conj):
        out = []
        lit = {8: "0x41000000", 128: "0x43000000"}.get(mult)
        for m in ms:
            t = TT + 4 * m
            if mult == 1:
                out.append("v_fract_f32 v%d, v%d" % (t + 1, F + 2 + m))
                out.append("v_exp_f32 v%d, v%d" % (t, F + m))
            else:
                out.append("v_mul_f32 v%d, %s, v%d" % (t + 1, lit, F + 2 + m))
                out.append("v_mul_f32 v%d, %s, v%d" % (t, lit, F + m))
                out.append("v_fract_f32 v%d, v%d" % (t + 1, t + 1))
                out.append("v_exp_f32 v%d, v%d" % (t, t))
        for m in ms:
            t = TT + 4 * m
            out.append("v_cos_f32 v%d, v%d" % (t + 2, t + 1))
            out.append("v_sin_f32 v%d, v%d" % (t + 3, t + 1))
        for m in ms:
            t = TT + 4 * m
            out.append("v_mul_f32 v%d, v%d, v%d" % (t + 2, t, t + 2))
            out.append("v_mul_f32 v%d, v%d, v%d" % (t + 3, t, t + 3))
        for m in ms:
            t = TT + 4 * m
            out.append("v_cvt_pk_f16_f32 v%d, v%d, %sv%d" % (dst[m], t + 2, "-" if conj else "", t + 3))
        return out

    for x in direct(8, l1, True):
        e(x)
    side = []
    g = Em()
    for p in range(2, 6):
        for m in ms:
            unpack(g, F + 2 * p + m, RAW + p, m)
    side += [x.strip() for x in g.lines]
    for m in ms:
        side.append("v_mul_f32 v%d, v%d, v%d" % (CF + 2 * m, F + 8 + m, F + 4 + m))
        side.append("v_mul_f32 v%d, v%d, v%d" % (CF + 2 * m + 1, F + 8 + m, F + 6 + m))
    for m in ms:
        side.append("v_fma_f32 v%d, -v%d, v%d, v%d" % (CF + 2 * m, F + 10 + m, F + 6 + m, CF + 2 * m))
        side.append("v_fmac_f32 v%d, v%d, v%d" % (CF + 2 * m + 1, F + 10 + m, F + 4 + m))
    m0, m1 = ms[0], ms[-1]
    side.append("v_max_f32_e64 v%d, abs(v%d), abs(v%d)" % (KVS, CF + 2 * m0, CF + 2 * m0 + 1))
    if len(ms) == 2:
        side.append("v_max3_f32 v%d, v%d, abs(v%d), abs(v%d)" % (KVS, KVS, CF + 2, CF + 3))
    side.append("v_log_f32 v%d, v%d" % (KVS, KVS))
    side.append("v_max3_f32 v%d, 0, v%d, v%d" % (KSQ, F + m0, F + m1))
    side.append("v_fmac_f32 v%d, 0x45000000, v%d" % (KVS, KSQ))
    d1 = direct(1, w1, False) + direct(128, w128, False)
    red = ["row_shr:1", "row_shr:2", "row_shr:4", "row_shr:8", "row_bcast:15 row_mask:0xa", "row_bcast:31 row_mask:0xc"]
    for k, mode in enumerate(red):
        side += d1[:2]
        d1 = d1[2:]
        rm = "" if "row_mask" in mode else " row_mask:0xf"
        side.append("v_max_f32_dpp v%d, v%d, v%d %s%s bank_mask:0xf" % (KVS, KVS, KVS, mode, rm))
    side.append(d1.pop(0))
    side.append("v_readlane_b32 s%d, v%d, 63" % (S_T1, KVS))
    side += d1[:2]
    d1 = d1[2:]
    side.append("v_ceil_f32 v%d, s%d" % (KVS, S_T1))
    side.append("v_max_f32 v%d, 0xc2c80000, v%d" % (KVS, KVS))
    side.append("v_min_f32 v%d, 0x42e00000, v%d" % (KVS, KVS))
    side.append("v_subrev_f32 v%d, 0x41600000, v%d" % (KSQ, KVS))
    side.append("v_sub_f32 v%d, 0x41600000, v%d" % (KVS, KVS))
    side.append("v_exp_f32 v%d, v%d" % (KSQ, KSQ))
    side.append("v_exp_f32 v%d, v%d" % (KVS, KVS))
    side.append("v_mul_f32 v%d, v%d, v%d" % (KVU, KVU, KSQ))
    h0 = [HA, HA + 1]
    for m in ms:
        for k in range(2):
            side.append("v_mul_f32 v%d, v%d, v%d" % (CF + 2 * m + k, KVS, CF + 2 * m + k))
    for m in ms:
        side.append("v_cvt_pk_f16_f32 v%d, v%d, v%d" % (h0[m], CF + 2 * m, CF + 2 * m + 1))
    side += d1

    def mfmas(acc):
        return [(lambda ks=ks: e("v_mfma_f32_16x16x32_f16 %s, %s, %s, %s" % (vr(acc, 4), vr(AF + 4 * ks, 4), vr(LB + 4 * ks, 4), "0" if ks == 0 else vr(acc, 4)))) for ks in range(nk)]

    nreg = [HA + 2]

    def new():
        r = nreg[0]
        nreg[0] = r + 2 if r + 2 < RAW1 else HA + 2
        return [r, r + 1]
    val = {("L", 1): l1, (0, 0): h0}
    tiles = []
    t = [(None, None, None, ("L", 1), 1)]
    for j in range(2, 16):
        t.append((("L", j), ("L", j - 1), l1, ("L", j), j))
    tiles.append((t, LB, KVR, None))
    t = [(None, None, None, (0, 0), 0)]
    for y in range(1, 8):
        t.append(((0, y), (0, y - 1), w1, (0, y), y))
    for y in range(8):
        t.append(((1, y), (0, y), w128, (1, y), 8 + y))
    tiles.append((t, AF, KVR, KT0))
    t = []
    for h in (2, 3):
        for i, y in enumerate((0, 2, 4, 6)):
            t.append(((h, y), (h - 1, y), w128, (h, y), 4 * (h - 2) + i))
    for h in range(4, 8):
        for i, y in enumerate((0, 4)):
            t.append(((h, y), (h - 1, y), w128, (h, y), 8 + 2 * (h - 4) + i))
    tiles.append((t, AF, KVR, KT1))
    t = [((h, 0), (h - 1, 0), w128, (h, 0), SLOT_OF[h]) for h in range(8, 17)]
    tiles.append((t, AF, KVR2, KT2))
    ldsq, mq = [], []
    rowno = row0
    per = -(-len(side) // 14)
    pend_tag = None
    bud = (3 * len(ms) + 1) // 2
    for ti, (t, fdst, fva, acc) in enumerate(tiles):
        for ri, (d, sr, fac, key, slot) in enumerate(t):
            if d is not None:
                val[d] = new()
                for m in ms:
                    e("v_pk_mul_f16 v%d, v%d, v%d op_sel_hi:[0,1]" % (TM[m], val[sr][m], fac[m]))
                budget = bud
                if ldsq:
                    c, fn = ldsq.pop(0); fn(); budget -= c
                for m in ms:
                    e("v_pk_fma_f16 v%d, v%d, v%d, v%d op_sel:[1,1,0] op_sel_hi:[1,0,1] neg_lo:[0,1,0]" % (val[d][m], val[sr][m], fac[m], TM[m]))
                if ti == 0:
                    for x in side[:per]:
                        e(x)
                    side = side[per:]
                while ldsq and budget > 0:
                    c, fn = ldsq.pop(0); fn(); budget -= c
                if pend_tag and not any(c == 2 for c, _ in ldsq) and ri >= cfg.kmf:
                    e.wait_lg(pend_tag[0])
                    mq = mfmas(pend_tag[1])
                    pend_tag = None
                for _ in range(len(ms)):
                    if mq:
                        mq.pop(0)()
            for k, m in enumerate(ms):
                ldsq.append((1, lambda m=m, k=k, key=key, slot=slot: e.lds("ds_write_addtid_b32 v%d offset:%d" % (val[key][m], slot * TROW + 256 * k))))
            rowno += 1
            if cfg.kstamps and rowno in (15, 31, 47, 115, 131, 147):
                stamp(e, cfg, 42 + (15, 31, 47, 115, 131, 147).index(rowno))
            for fn in hooks.get(rowno, []):
                fn()
        if pend_tag:
            while any(c == 2 for c, _ in ldsq):
                ldsq.pop(0)[1]()
            e.wait_lg(pend_tag[0])
            mq = mfmas(pend_tag[1])
            pend_tag = None
        while mq:
            if ldsq:
                ldsq.pop(0)[1]()
            mq.pop(0)()
        tg = "t%d" % (ti - 1)
        for ks in range(nk):
            ldsq.append((2, lambda ks=ks, fdst=fdst, fva=fva, tg=tg: e.lds("ds_read_b128 %s, v%d offset:%d" % (vr(fdst + 4 * ks, 4), fva, 64 * ks), tg)))
        if acc is not None and ti < 3:
            pend_tag = (tg, acc)
    run([fn for c, fn in ldsq])
    run(tail)
    for k in range(4):
        e("v_mov_b32 v%d, 0" % (68 + k))
    for k in range(8):
        e("v_mul_f32 v%d, v%d, v%d" % (KT0 + k, KVU, KT0 + k))
    e.wait_lg("t2")
    run(mfmas(KT2))
    stamp(e, cfg, 5 if row0 == 0 else 9)


def kexpand(e, cfg, t2fix, sid):
    T0, T1, T2 = KT0, KT1, KT2
    XA, XB, XC, XD = KXA, KXB, KXC, KXD
    N = 76
    C = 132
    e.lds("ds_write_b128 v%d, %s" % (KZA, vr(68, 4)))

    def nxt(lst):
        for n, a, b in lst:
            e("v_mov_b32_dpp v%d, v%d row_ror:15 row_mask:0xf bank_mask:0xf" % (n, b))
        e("s_nop 1")
        for n, a, b in lst:
            e("v_mov_b32_dpp v%d, v%d row_shl:1 row_mask:0xf bank_mask:0xf" % (n, a))

    def pk(d, lo, hi):
        e("v_cvt_pk_bf16_f32 v%d, v%d, v%d" % (d, lo, hi))

    a, b, c, d = T1, T1 + 1, T1 + 2, T1 + 3
    C4 = C
    pk(C4, T0, T0 + 1); pk(C4 + 1, T0 + 2, T0 + 3); pk(C4 + 2, T0 + 1, T0 + 2)
    e.lds("ds_write_b64 v%d, %s offset:%d" % (XD, vr(C4, 2), KC1 + 448))
    C2 = C + 4
    C3 = C + 12
    nxt([(N + 1, a, c)])
    pk(C2, a, a); pk(C2 + 4, a, a)
    e("s_mov_b32 exec_hi, 0")
    pk(C2 + 1, b, c); pk(C2 + 2, c, c)
    pk(C2 + 5, a, b); pk(C2 + 6, c, c); pk(C2 + 7, c, d)
    e("s_not_b64 exec, exec")
    pk(C2 + 1, a, b); pk(C2 + 2, b, b); pk(C2 + 3, N + 1, N + 1)
    pk(C2 + 5, a, a); pk(C2 + 6, b, b); pk(C2 + 7, b, N + 1)
    e("s_mov_b64 exec, -1")
    e.lds("ds_write_b128 v%d, %s offset:%d" % (XC, vr(C2 + 4, 4), KC0 + 448))
    e.lds("ds_write_b16 v%d, v%d offset:%d" % (XD, C4, KC0 + 450))
    e.lds("ds_write_b32 v%d, v%d offset:%d" % (XD, C4 + 2, KC0 + 452))
    e.lds("ds_write_b16_d16_hi v%d, v%d offset:%d" % (XD, C4 + 1, KC0 + 456))
    pk(C3, c, c); pk(C3 + 1, c, d); pk(C3 + 2, d, d)
    pk(C3 + 4, c, c); pk(C3 + 5, c, c); pk(C3 + 6, d, d)
    t2fix()
    nxt([(N, a, T2 + 3), (N + 2, c, T2 + 3)])
    e("s_mov_b32 exec_hi, 0")
    pk(C2 + 3, d, N)
    e("s_not_b64 exec, exec")
    pk(C3 + 3, N + 2, N + 2); pk(C3 + 7, d, N + 2)
    e.lds("ds_write_b128 v%d, %s offset:%d" % (XB, vr(C3, 4), KC1 + 448 + 256))
    e.lds("ds_write_b128 v%d, %s offset:%d" % (XB, vr(C3 + 4, 4), KC0 + 448 + 256))
    e("s_mov_b64 exec, -1")
    e.lds("ds_write_b128 v%d, %s offset:%d" % (XC, vr(C2, 4), KC1 + 448))
    C5 = C + 20
    nxt([(N + z, T2 + z, T2 + z + 1) for z in range(2)])
    for z in range(2):
        v0 = T2 + z
        n0 = N + z
        s = N + 2 + z
        e("v_cndmask_b32 v%d, v%d, v%d, vcc" % (s, v0, n0))
        c1 = C5 + 8 * z
        c0 = c1 + 4
        pk(c1, v0, v0); pk(c1 + 1, v0, v0); pk(c1 + 2, s, n0); pk(c1 + 3, n0, n0)
        e.lds("ds_write_b128 v%d, %s offset:%d" % (XB, vr(c1, 4), KC1 + 448 + 256 * (8 + z)))
        pk(c0, v0, v0); pk(c0 + 1, v0, v0); pk(c0 + 2, v0, s); pk(c0 + 3, n0, n0)
        e.lds("ds_write_b128 v%d, %s offset:%d" % (XB, vr(c0, 4), KC0 + 448 + 256 * (8 + z)))
    stamp(e, cfg, sid)


def setup_flags(e):
    e("s_mov_b32 s%d, 0xffff0000" % S_MASK)
    e("s_mul_i32 s%d, s%d, %d" % (S_LB, S_W, KS))
    e("s_lshl_b32 s%d, s%d, 2" % (S_T0, S_W))
    e("s_add_u32 s%d, s%d, %d" % (S_T1, S_T0, FLG))
    e("v_mov_b32 v%d, s%d" % (V_FW, S_T1))
    e("s_and_b32 s%d, s%d, 16" % (S_T0, S_T0))
    e("s_sub_u32 s%d, %d, s%d" % (S_T0, FLG + 16, S_T0))
    e("v_mov_b32 v%d, s%d" % (V_FA, S_T0))
    e("v_mov_b32 v%d, 0" % V_X2)
    e.lds("ds_write_b32 v%d, v%d" % (V_FW, V_X2))
    e.barrier()


def karg_wait(e, cfg):
    stamp(e, cfg, 7)
    e("s_waitcnt lgkmcnt(0)")
    stamp(e, cfg, 8)


def setup_M(e):
    L = V_LANE
    e("v_and_b32 v%d, 1, v%d" % (V_X2, L))
    e("v_xor_b32 v%d, 1, v%d" % (V_X2, V_X2))
    e("v_and_b32 v%d, 48, v%d" % (V_X1, L))
    e("v_mul_u32_u24 v%d, %d, v%d" % (V_A, KC0, V_X2))
    e("v_bfe_u32 v%d, v%d, 1, 3" % (V_X0, L))
    e("v_lshl_add_u32 v%d, v%d, 6, v%d" % (V_A, V_X0, V_A))
    e("v_add3_u32 v%d, v%d, v%d, s%d" % (V_A, V_A, V_X1, S_LB))
    e("s_lshl_b32 s%d, s%d, 2" % (S_T0, S_W))
    e("s_and_b32 s%d, s%d, 8" % (S_T0, S_T0))
    e("s_add_u32 s%d, s%d, %d" % (S_T0, S_T0, UD))
    e("v_mul_u32_u24 v%d, s%d, v%d" % (V_B, S_T0, V_X2))
    e("v_lshlrev_b32 v%d, 3, v%d" % (V_X0, V_X0))
    e("v_sub_u32 v%d, v%d, v%d" % (V_B, V_B, V_X0))
    e("s_mul_i32 s%d, s%d, %d" % (S_T1, S_W, CS))
    e("s_add_u32 s%d, s%d, %d" % (S_T1, S_T1, UC1))
    e("v_add3_u32 v%d, v%d, v%d, s%d" % (V_B, V_B, V_X1, S_T1))
    e("v_and_b32 v%d, 31, v%d" % (V_X0, L))
    e("v_min_u32 v%d, 14, v%d" % (V_X0, V_X0))
    e("v_lshlrev_b32 v%d, 2, v%d" % (V_X0, V_X0))
    e("v_lshrrev_b32 v%d, 5, v%d" % (V_X1, L))
    e("s_add_u32 s%d, s%d, -4" % (S_T0, S_T0))
    e("v_mul_u32_u24 v%d, s%d, v%d" % (V_X1, S_T0, V_X1))
    e("v_add3_u32 v%d, v%d, v%d, s%d" % (V_X0, V_X0, V_X1, S_T1))
    e("v_mov_b32 v%d, 0" % V_X1)
    e.lds("ds_write_b32 v%d, v%d offset:4096" % (V_X0, V_X1))
    e.lds("ds_write_b32 v%d, v%d offset:%d" % (V_X0, V_X1, 4096 + 4 * CS))
    e("v_lshlrev_b32 v%d, 3, v%d" % (V_YW, L))
    e("s_add_u32 s%d, s%d, 3072" % (S_T1, S_T1))
    e("v_add_u32 v%d, s%d, v%d" % (V_YW2, S_T1, V_YW))
    e("s_mul_i32 s%d, s%d, %d" % (S_T0, S_W, YCS))
    e("s_add_u32 s%d, s%d, %d" % (S_T0, S_T0, YST))
    e("v_add_u32 v%d, s%d, v%d" % (V_YW, S_T0, V_YW))


def setup_H_col(e):
    L = V_LANE
    for i in range(1, 4):
        e("s_movk_i32 s%d, %d" % (S_ROW[i], 4096 * i))
    for mb in (1, 2, 3, 4, 6):
        e("s_mov_b32 %s, 0x%x" % (MB[mb], mb << 20))
    e("v_lshrrev_b32 v%d, 2, v%d" % (V_X0, L))
    e("v_lshlrev_b32 v%d, 14, v%d" % (V_COL, V_X0))
    e("v_and_b32 v%d, 3, v%d" % (V_X1, L))
    e("v_lshl_add_u32 v%d, v%d, 2, v%d" % (V_COL, V_X1, V_COL))
    e("s_lshl_b32 s%d, s%d, 18" % (S_T0, S_H))
    e("s_lshl_b32 s%d, s%d, 4" % (S_T1, S_CG))
    e("s_add_u32 s%d, s%d, s%d" % (S_T0, S_T0, S_T1))
    e("v_add_u32 v%d, s%d, v%d" % (V_COL, S_T0, V_COL))
    for i in range(1, 4):
        e("v_add_u32 v%d, %s, v%d" % (V_COL + i, MB[i], V_COL))


def setup_H(e, typ):
    L = V_LANE
    e("v_lshrrev_b32 v%d, 2, v%d" % (V_X0, L))
    e("v_and_b32 v%d, 3, v%d" % (V_X1, L))
    e("v_mul_u32_u24 v%d, %d, v%d" % (V_U1, 2 * CS, V_X1))
    e("v_lshlrev_b32 v%d, 4, v%d" % (V_X2, V_X0))
    e("v_sub_u32 v%d, v%d, v%d" % (V_U1, V_U1, V_X2))
    e("s_lshl_b32 s%d, s%d, 8" % (S_T0, S_H))
    e("s_sub_u32 s%d, %d, s%d" % (S_T0, UC1 + 4080 - 3072, S_T0))
    e("v_add_u32 v%d, s%d, v%d" % (V_U1, S_T0, V_U1))
    e("v_and_b32 v%d, 1, v%d" % (V_X2, L))
    e("v_lshl_add_u32 v%d, v%d, 3, v%d" % (V_U0A, V_X2, V_U1))
    e("v_add_u32 v%d, %d, v%d" % (V_U0A, UD - 4, V_U0A))
    e("v_add_u32 v%d, %d, v%d" % (V_U0B, CS, V_U0A))
    e("v_lshl_add_u32 v%d, v%d, 1, v%d" % (V_X0, V_X0, V_X2))
    e("v_bfe_u32 v%d, v%d, 1, 1" % (V_X2, L))
    e("v_lshl_add_u32 v%d, v%d, 5, v%d" % (V_X0, V_X2, V_X0))
    e("s_lshl_b32 s%d, s%d, 6" % (S_T0, S_H))
    e("v_add_u32 v%d, s%d, v%d" % (V_X0, S_T0, V_X0))
    e("s_lshl_b32 s%d, s%d, 4" % (S_T1, S_CG))
    if typ == "B":
        e("v_lshlrev_b32 v%d, 11, v%d" % (V_QO, V_X0))
        e("v_add_u32 v%d, s%d, v%d" % (V_QO, S_T1, V_QO))
        e("v_add_u32 v%d, 0x80000, v%d" % (V_QO + 1, V_QO))
        e("s_add_u32 s%d, s%d, 2048" % (S_T1, S_T1))
    e("v_lshlrev_b32 v%d, 12, v%d" % (V_OO, V_X0))
    e("v_add_u32 v%d, s%d, v%d" % (V_OO, S_T1, V_OO))
    e("v_add_u32 v%d, %s, v%d" % (V_OO + 1, MB[1], V_OO))
    e("v_and_b32 v%d, 48, v%d" % (V_X2, L))
    e("v_lshlrev_b32 v%d, 1, v%d" % (V_X2, V_X2))
    e("v_lshl_add_u32 v%d, v%d, 3, v%d" % (V_X2, V_X1, V_X2))
    e("v_bfe_u32 v%d, v%d, 2, 2" % (V_X0, L))
    e("v_mul_u32_u24 v%d, %d, v%d" % (V_YR, YCS, V_X0))
    e("v_mul_u32_u24 v%d, %d, v%d" % (V_YR2, CS, V_X0))
    e("s_lshl_b32 s%d, s%d, 7" % (S_T0, S_H))
    e("s_add_u32 s%d, s%d, %d" % (S_T1, S_T0, YST))
    e("v_add3_u32 v%d, v%d, v%d, s%d" % (V_YR, V_YR, V_X2, S_T1))
    e("s_add_u32 s%d, s%d, %d" % (S_T1, S_T0, UC1 + 3072))
    e("v_add3_u32 v%d, v%d, v%d, s%d" % (V_YR2, V_YR2, V_X2, S_T1))


def run(l):
    for x in l:
        x()


def set_prog(cfg, i, gate):
    allp, comp, rest = set_pairs(i)
    t = [2 * i, 2 * i + 1]
    if cfg.split[i] == "1" and rest:
        return [("pass", 0, comp, gate), ("y", 0, t, None), ("pass", 1, comp, gate), ("y", 1, t, i + 1),
                ("pass", 0, rest, gate), ("pass", 1, rest, gate)]
    if cfg.split[i] == "2" and rest:
        return [("pass", 0, allp, gate), ("y", 0, t, None), ("pass", 1, comp, gate), ("y", 1, t, i + 1),
                ("pass", 1, rest, gate)]
    return [("pass", 0, allp, gate), ("y", 0, t, None), ("pass", 1, allp, gate), ("y", 1, t, i + 1)]


def prog_B_M(e, cfg):
    KD = [64, 80]; PV = [96, 100]; DD = [104, 105]; OUT = [108, 20]
    e("v_lshlrev_b32 v36, 4, v%d" % V_LANE)
    e("s_lshl_b32 s%d, s%d, 12" % (S_T0, S_CH))
    e("v_add_u32 v37, s%d, v36" % S_T0)
    e("v_add_u32 v38, 0x4000, v37")
    e("v_lshlrev_b32 v39, 12, v%d" % V_LANE)
    e("s_lshl_b32 s%d, s%d, 1" % (S_T0, S_CH))
    e("v_add_u32 v39, s%d, v39" % S_T0)
    srd_tail(e, R_KROW, 0x400000)
    srd_tail(e, R_DD, 2048)
    karg_wait(e, cfg)
    srd_head(e, R_KROW, P_SSK)
    srd_head(e, R_DD, P_SSD)

    def kissue(c):
        for i in range(4):
            e.vmem("buffer_load_dwordx4 %s, v%d, %s, 0 offen offset:%d" % (vr(KD[c] + 4 * i, 4), 37 + c, srd(R_KROW), 1024 * i), "K%d" % c)

    def kfinish(c):
        e.wait_vm("K%d" % c)
        for i in range(1, 4):
            e("v_mov_b32_dpp v%d, v%d wave_ror:1 row_mask:0xf bank_mask:0xf" % (PV[c] + i, KD[c] + 4 * i - 1))
        e("v_lshlrev_b32 v%d, 16, v%d" % (DD[c], DD[c]))
        e("v_lshlrev_b32 v106, 16, v%d" % KD[c])
        for i in range(4):
            e("v_mov_b32_dpp v%d, v%d wave_shr:1 row_mask:0xf bank_mask:0xf" % (PV[c] + i, KD[c] + 4 * i + 3))
        e("v_and_b32 v107, s%d, v%d" % (S_MASK, KD[c]))
        e("v_add_f32 v106, v106, v%d" % DD[c])
        e("v_cvt_pk_bf16_f32 v%d, v106, v107" % KD[c])
        for i in range(4):
            k = KD[c] + 4 * i
            o = OUT[c] + 4 * i
            e.lds("ds_write_b128 v40, %s offset:%d" % (vr(k, 4), KC1 + 448 + 1024 * i + 4 * KS * c))
            e("v_alignbit_b32 v%d, v%d, v%d, 16" % (o, k, PV[c] + i))
            for d in range(1, 4):
                e("v_alignbit_b32 v%d, v%d, v%d, 16" % (o + d, k + d, k + d - 1))
            e.lds("ds_write_b128 v40, %s offset:%d" % (vr(o, 4), KC0 + 448 + 1024 * i + 4 * KS * c))

    kissue(0)
    e.vmem("buffer_load_ushort v%d, v39, %s, 0 offen" % (DD[0], srd(R_DD)), "K0")
    e.vmem("buffer_load_ushort v%d, v39, %s, 0 offen offset:8" % (DD[1], srd(R_DD)), "K0")
    if cfg.k1early == 1:
        kissue(1)
    e.cut("L_BM_body")
    setup_flags(e)
    e("v_add_u32 v40, s%d, v36" % S_LB)
    for i in range(4):
        e("v_mov_b32 v%d, 0" % (44 + i))
    e("v_mov_b32 v%d, 0" % PV[0])
    e("v_mov_b32 v%d, 0" % PV[1])
    e("v_and_b32 v%d, 31, v%d" % (V_X0, V_LANE))
    e("v_min_u32 v%d, 27, v%d" % (V_X0, V_X0))
    e("v_lshlrev_b32 v%d, 4, v%d" % (V_X0, V_X0))
    e("v_lshrrev_b32 v%d, 5, v%d" % (V_X2, V_LANE))
    e("v_mul_u32_u24 v%d, %d, v%d" % (V_X2, KC0, V_X2))
    e("v_add3_u32 v%d, v%d, v%d, s%d" % (V_X0, V_X0, V_X2, S_LB))
    e.lds("ds_write_b128 v%d, v[44:47]" % V_X0)
    e.lds("ds_write_b128 v%d, v[44:47] offset:%d" % (V_X0, 4 * KS))
    setup_M(e)
    if cfg.k1early == 2:
        kissue(1)
    e.wait_vm("K0")
    stamp(e, cfg, 1)
    if cfg.k1early == 0:
        kissue(1)
    kfinish(0)
    pre = preload_cache(e, 0)
    e.wait_vm("K1")
    stamp(e, cfg, 2)
    kfinish(1)
    pre |= preload_cache(e, 1)
    stamp(e, cfg, 3)
    prog = []
    for i in range(4):
        prog += set_prog(cfg, i, i + 1)
    e("s_setprio %d" % cfg.mprioB)
    conv(e, cfg, prog, pre)
    finish(e, cfg)


def prog_B_H(e, cfg):
    L_ = V_LANE
    if cfg.bpf:
        pf_setup(e)
    karg_wait(e, cfg)
    if cfg.bpf:
        for p in (P_K, P_V):
            e.vmem("global_load_dword v%d, v%d, s[%d:%d]" % (V_PF, PF16, p, p + 1), "pf")
    for i in range(1, 4):
        e("s_movk_i32 s%d, %d" % (S_ROW[i], 4096 * i))
    e("v_lshrrev_b32 v%d, 2, v%d" % (V_X0, L_))
    e("v_lshlrev_b32 v%d, 14, v%d" % (V_COL, V_X0))
    e("v_and_b32 v%d, 3, v%d" % (V_X1, L_))
    e("v_lshl_add_u32 v%d, v%d, 2, v%d" % (V_COL, V_X1, V_COL))
    e("s_lshl_b32 s%d, s%d, 18" % (S_T0, S_H))
    e("s_lshl_b32 s%d, s%d, 4" % (S_T1, S_CG))
    e("s_add_u32 s%d, s%d, s%d" % (S_T0, S_T0, S_T1))
    e("v_add_u32 v%d, s%d, v%d" % (V_COL, S_T0, V_COL))
    e("v_lshlrev_b32 v%d, 4, v%d" % (V_X1, V_X1))
    e("s_lshl_b32 s%d, s%d, 6" % (S_T1, S_CG))
    e("v_add_u32 v%d, s%d, v%d" % (V_X1, S_T1, V_X1))
    srd_tail(e, R_D0, 0x400000)
    srd_tail(e, R_V, 0x400000)
    srd_head(e, R_D0, P_K)
    srd_head(e, R_V, P_V)
    WR = V_TB
    L = [loads_B(e, i) for i in range(4)]
    Qs = [loads_q(e, i) for i in range(4)]
    e.vmem("global_load_dwordx4 %s, v%d, s[%d:%d]" % (vr(WR, 4), V_X1, P_SHK, P_SHK + 1), "W")
    run(L[0][:8])
    e.cut("L_BH_body")
    setup_flags(e)
    for mb in (1, 2, 3, 4, 6):
        e("s_mov_b32 %s, 0x%x" % (MB[mb], mb << 20))
    for i in range(1, 4):
        e("v_add_u32 v%d, %s, v%d" % (V_COL + i, MB[i], V_COL))
    for i in range(4):
        e("v_subrev_u32 v%d, 6144, v%d" % (V_HALO + i, V_COL + i))
    e("v_and_b32 v%d, 0x0fffffff, v%d" % (V_HALO, V_HALO))
    e("v_and_b32 v%d, 12, v%d" % (V_X2, V_LANE))
    for i in range(4):
        e("v_lshl_add_u32 v%d, v%d, 27, v%d" % (V_HALO + i, V_X2, V_HALO + i))
    srd_tail(e, R_Q, 0x400000)
    srd_tail(e, R_OUT, 0x800000)
    srd_head(e, R_Q, P_Q)
    srd_head(e, R_OUT, P_OUT)
    setup_H(e, "B")
    run(L[0][8:])
    stamp(e, cfg, 6)
    e.wait_vm("W")
    for z in range(2):
        for tap in range(4):
            unpack(e, V_W + 2 * tap + z, WR + 2 * z + (tap >> 1), tap & 1)
    pos = [19, 0, 0, 0]
    for x in cfg.bh.split(","):
        i = int(x[1])
        if x[0] == "L":
            n = int(x[3:]) if len(x) > 2 else 19
            run(L[i][pos[i]:n])
            pos[i] = n
        elif x[0] == "W":
            assert pos[i] == 19
            e.wait_vm("D%d" % i)
            stamp(e, cfg, 20 + i)
            if i == 0:
                e("s_setprio 2")
        elif x[0] == "P":
            assert pos[i] == 19
            e.wait_vm("D%d" % i)
            (process_B_pk if i == 0 else process_B)(e, i)
            flag_set(e, i + 1)
            stamp(e, cfg, 10 + i)
        elif x[0] == "q":
            run(Qs[i])
        elif x[0] == "E":
            flag_read(e)
            flag_check(e, i + 1, 1)
            stamp(e, cfg, 30 + i)
            epilogue(e, "B", i)
    finish(e, cfg)


def par_loads(e, raw, tag, c):
    e.vmem("global_load_ushort v%d, v%d, s[%d:%d] offset:%d" % (raw + 6, V_X1, P_LDT, P_LDT + 1, 8 * c), tag)
    for i, p in enumerate((P_ARE, P_AIM, P_BRE, P_BIM, P_CRE, P_CIM)):
        e.vmem("global_load_dword v%d, v%d, s[%d:%d] offset:%d" % (raw + i, V_X0, p, p + 1, 1024 * c), tag)
    e.vmem("buffer_load_ushort v%d, v%d, %s, 0 offen offset:%d" % (raw + 7, V_X2, srd(R_DD), 8 * c), tag)


def prog_A_common(e, cfg):
    e("s_and_b32 s%d, s%d, -5" % (S_T1, S_CH))
    e("v_lshlrev_b32 v%d, 2, v%d" % (V_X0, V_LANE))
    e("v_lshl_add_u32 v%d, s%d, 8, v%d" % (V_X0, S_T1, V_X0))
    e("s_lshl_b32 s%d, s%d, 1" % (S_T0, S_T1))
    e("v_mov_b32 v%d, s%d" % (V_X1, S_T0))
    e("v_lshl_add_u32 v%d, v%d, 12, v%d" % (V_X2, V_LANE, V_X1))
    srd_tail(e, R_DD, 2048)
    karg_wait(e, cfg)
    srd_head(e, R_DD, P_DSK)
    par_loads(e, RAW0, "par", 0)


def pf_setup(e):
    e("s_and_b32 s%d, s%d, 15" % (S_ROT, S_CG))
    e("s_lshl_b32 s%d, s%d, 2" % (S_ROT, S_ROT))
    e("s_add_u32 s%d, s%d, s%d" % (S_ROT, S_ROT, S_H))
    e("s_lshl_b32 s%d, s%d, 8" % (S_T1, S_XCD))
    e("s_lshl_b32 s%d, s%d, 14" % (S_T0, S_ROT))
    e("s_add_u32 s%d, s%d, s%d" % (S_T0, S_T0, S_T1))
    e("v_lshrrev_b32 v12, 3, v%d" % V_LANE)
    e("v_lshlrev_b32 v12, 11, v12")
    e("v_and_b32 v13, 4, v%d" % V_LANE)
    e("v_lshl_add_u32 v12, v13, 5, v12")
    e("v_add_u32 v%d, s%d, v12" % (PF16, S_T0))


def pf_setup2(e):
    e("s_lshl_b32 s%d, s%d, 15" % (S_T0, S_ROT))
    e("s_add_u32 s%d, s%d, s%d" % (S_T0, S_T0, S_T1))
    e("v_lshrrev_b32 v12, 2, v%d" % V_LANE)
    e("v_lshlrev_b32 v12, 11, v12")
    e("v_and_b32 v13, 2, v%d" % V_LANE)
    e("v_lshl_add_u32 v12, v13, 6, v12")
    e("v_add_u32 v%d, s%d, v12" % (PF32, S_T0))
    e("s_lshl_b32 s%d, s%d, 12" % (S_T0, S_CH))
    e("s_sub_u32 s%d, s%d, 0x4000" % (S_T0, S_T0))
    e("v_lshlrev_b32 v12, 6, v%d" % V_LANE)
    e("v_add_u32 v%d, s%d, v12" % (PFS, S_T0))
    e("s_movk_i32 s%d, 0x4000" % S_PC)


def pf_item(e, cfg, spec):
    a, n = spec[0], int(spec[1])
    if a == "s":
        reg, rs, so = PFS, R_KROW, ("0" if n == 0 else "s%d" % S_PC)
    else:
        rs = {"k": R_PK, "v": R_V, "q": R_Q, "u": R_D0}[a.lower()]
        reg = PF32 if a.isupper() else PF16
        so = MB[n]
    return lambda: e.vmem("buffer_load_dword v%d, v%d, %s, %s offen%s" % (V_PF, reg, srd(rs), so, cfg.pfflag), "pf")


def prog_A_M(e, cfg):
    setup_flags(e)
    kgen_addr(e)
    setup_M(e)
    ev = cfg.aev
    PS = 20
    ktables(e, cfg, [0], RAW0, "par", {cfg.mlead: [lambda: e("s_setprio 2")]}, tail=[lambda: flag_read(e)])
    flag_check(e, ev["X"], 0)
    for k in range(3):
        e.lds("ds_read_b128 %s, v%d offset:%d" % (vr(PS + 4 * k, 4), KXE, 256 + 4 * TROW * k), "ps%d" % k)
    e("v_add_f32 v%d, v%d, v%d" % (KT0, KT0, KVD))
    e.wait_lg("ps1")
    for k in range(8):
        e("v_add_f32 v%d, v%d, v%d" % (KT0 + k, KT0 + k, PS + k))

    def t2fix():
        e.wait_lg("ps2")
        for k in (3, 0, 1, 2):
            e("v_fma_f32 v%d, v%d, v%d, v%d" % (KT2 + k, KVU, KT2 + k, PS + 8 + k))
    kexpand(e, cfg, t2fix, 2)
    e("s_setprio %d" % cfg.mprioA)
    S = [set_pairs(i) for i in range(4)]
    g = lambda *x: max(ev[k] for k in x)
    D = lambda i: ["D%d" % k for k in range(i + 1)]
    n0 = cfg.c0first
    prog = []
    for i in range(n0):
        prog += [("pass", 0, S[i][0], g(*D(i))), ("y", 0, [2 * i, 2 * i + 1], None)]
    for i in range(n0):
        gi = g("K1", *D(n0 - 1))
        prog += [("pass", 1, S[i][1], gi), ("y", 1, [2 * i, 2 * i + 1], i + 1)]
        if S[i][2]:
            prog += [("pass", 1, S[i][2], gi)]
    for i in range(n0, 4):
        prog += set_prog(cfg, i, g("K1", *D(i)))
    conv(e, cfg, prog, set())
    finish(e, cfg)


def prog_A_H(e, cfg):
    L = [loads_A(e, i) for i in range(4)]
    cnt = [0]

    def item(x):
        if x[0] == "L":
            return lambda: run(L[int(x[1])])
        if x[0] == "P":
            def f(i=int(x[1])):
                e.wait_vm("D%d" % i)
                stamp(e, cfg, 20 + i)
                process_A(e, i)
                flag_set(e, cfg.aev["D%d" % i])
            return f
        if x[0] == "E":
            def f(i=int(x[1])):
                flag_read(e)
                flag_check(e, i + 1, 1)
                stamp(e, cfg, 30 + i)
                epilogue(e, "A", i)
            return f
        if x == "K":
            return lambda: flag_set(e, cfg.aev["K1"])
        return pf_item(e, cfg, x)
    hooks = {}
    for part in cfg.ah.split(";"):
        items, at = part.split("@")
        hooks.setdefault(int(at), []).extend(item(x) for x in items.split(","))
    first = hooks.pop(0, [])
    e.cut("L_AH_body")
    par_loads(e, RAW1, "par1", 1)
    for r in (R_PK, R_V):
        srd_tail(e, r, 0x400000)
    srd_head(e, R_PK, P_K)
    srd_head(e, R_V, P_V)
    pf_setup(e)
    e("s_mov_b32 s%d, 0x05040100" % S_SELLO)
    e("s_mov_b32 s%d, 0x07060302" % S_SELHI)
    for r in (R_D0, R_Q, R_KROW):
        srd_tail(e, r, 0x400000)
    srd_tail(e, R_OUT, 0x800000)
    srd_head(e, R_D0, P_U)
    srd_head(e, R_Q, P_Q)
    srd_head(e, R_KROW, P_SSK)
    srd_head(e, R_OUT, P_OUT)
    pf_setup2(e)
    setup_H_col(e)
    run(first)
    setup_flags(e)
    setup_H(e, "A")
    kgen_addr(e)
    e("s_setprio 1")
    last = hooks.pop(999)
    ktables(e, cfg, [1], RAW0, "par", hooks)
    e.lds("ds_write_b128 v%d, %s offset:256" % (KXE, vr(KT0, 4)))
    e.lds("ds_write_b128 v%d, %s offset:%d" % (KXE, vr(KT1, 4), 256 + 4 * TROW))
    e("s_nop 5")
    for k in range(4):
        e("v_mul_f32 v%d, v%d, v%d" % (KT2 + k, KVU, KT2 + k))
    e.lds("ds_write_b128 v%d, %s offset:%d" % (KXE, vr(KT2, 4), 256 + 8 * TROW))
    flag_set(e, cfg.aev["X"])
    run(hooks.pop(100, []))
    ktables(e, cfg, [0, 1], RAW1, "par1", hooks, row0=100)
    e("v_add_f32 v%d, v%d, v%d" % (KT0, KT0, KVD))

    def t2fix():
        for k in (3, 0, 1, 2):
            e("v_mul_f32 v%d, v%d, v%d" % (KT2 + k, KVU, KT2 + k))
    kexpand(e, cfg, t2fix, 2)
    run(last)
    finish(e, cfg)


def generate(cfg):
    e = Em()
    e("s_cmp_ge_u32 s2, 256")
    e("s_cbranch_scc1 L_exit")
    e("s_load_dwordx16 s[16:31], s[0:1], 0")
    e("s_load_dwordx16 s[32:47], s[0:1], 64")
    if cfg.stamps:
        e("s_memrealtime s[96:97]")
        e("s_memtime s[98:99]")
    if cfg.codepf:
        e("s_getpc_b64 s[%d:%d]" % (S_PC, S_PC + 1))
        e("s_lshr_b32 s%d, s2, 3" % S_T0)
        e("v_and_b32 v%d, 0x1e0, v0" % V_X1)
        e("v_add_lshl_u32 v%d, v%d, s%d, 7" % (V_X1, V_X1, S_T0))
        e("v_min_u32 v%d, L_exit-%s_kernel-64, v%d" % (V_X1, NAME, V_X1))
        e.vmem("global_load_dword v%d, v%d, s[%d:%d]" % (V_PF, V_X1, S_PC, S_PC + 1), "pf")
    e("v_lshrrev_b32 v%d, 6, v0" % V_X0)
    e("v_and_b32 v0, 63, v0")
    e("v_readfirstlane_b32 s%d, v%d" % (S_W, V_X0))
    e("s_and_b32 s%d, s2, 7" % S_XCD)
    e("s_lshl_b32 s%d, s%d, 4" % (S_T0, S_XCD))
    e("s_bfe_u32 s%d, s2, 0x40003" % S_T1)
    e("s_add_u32 s%d, s%d, s%d" % (S_CG, S_T0, S_T1))
    e("s_lshl_b32 s%d, s%d, 3" % (S_CH, S_CG))
    e("s_add_u32 s%d, s%d, s%d" % (S_CH, S_CH, S_W))
    e("s_and_b32 s%d, s%d, 3" % (S_H, S_W))
    e("s_cmp_ge_u32 s2, 128")
    e("s_cbranch_scc1 L_B")
    head = e
    start, bodies = list(e.lines), []

    def place(f):
        k = f.lines.index("@CUT")
        start.extend(f.lines[:k])
        bodies.append(f.lines[k + 1:])
    a = head.fork()
    prog_A_common(a, cfg)
    a("s_cmp_lt_u32 s%d, 4" % S_W)
    a("s_cbranch_scc1 L_AM_body")
    start.extend(a.lines)
    f = a.fork(); prog_A_H(f, cfg); place(f)
    f = a.fork(); f.label("L_AM_body"); prog_A_M(f, cfg); bodies.append(f.lines)
    f = head.fork(); f.label("L_B")
    f("s_cmp_ge_u32 s%d, 4" % S_W)
    f("s_cbranch_scc1 L_BH")
    prog_B_M(f, cfg); place(f)
    f = head.fork(); f.label("L_BH"); prog_B_H(f, cfg); place(f)
    out = start
    out.append("L_start_end:")
    for k in (3, 0, 1, 2):
        out += bodies[k]
    out.append("L_exit:")
    out.append("    s_endpgm")
    return out


def main():
    ap = argparse.ArgumentParser()
    ap.add_argument("-o", default="cdna_kernels/%s.s" % NAME)
    ap.add_argument("--stamps", action="store_true")
    ap.add_argument("--maxlg", type=int, default=60)
    ap.add_argument("--glead", type=int, default=14)
    ap.add_argument("--lat", type=int, default=8)
    ap.add_argument("--split", default="2220")
    ap.add_argument("--codepf", type=int, default=1)
    ap.add_argument("--k1early", type=int, default=0)
    ap.add_argument("--ah", default="U0,k1,v1,s1@0;L0@2;P0,K2,V2,L1@100;P1,U2@116;L2@124;Q0,P2,L3@140;P3,Q2@155;K,E0,E1,E2,E3@999")
    ap.add_argument("--c0first", type=int, default=4)
    ap.add_argument("--bpf", type=int, default=1)
    ap.add_argument("--mprioA", type=int, default=0)
    ap.add_argument("--mprioB", type=int, default=0)
    ap.add_argument("--pfflag", default="")
    ap.add_argument("--kstamps", type=int, default=0)
    ap.add_argument("--kmf", type=int, default=6)
    ap.add_argument("--bh", default="W0,L1:10,P0,L1,q0,L2:6,W1,P1,E0,L2,q1,L3:6,W2,P2,L3,q2,q3,W3,P3,E1,E2,E3")
    ap.add_argument("--mlead", type=int, default=56)
    cfg = ap.parse_args()
    evs = []
    for part in sorted(cfg.ah.split(";"), key=lambda p: int(p.split("@")[1])):
        if int(part.split("@")[1]) >= 100 and "X" not in evs:
            evs.append("X")
        for x in part.split("@")[0].split(","):
            if x[0] == "P":
                evs.append("D" + x[1])
            elif x == "K":
                evs.append("K1")
    cfg.aev = {k: i + 1 for i, k in enumerate(evs)}
    ref = open("cdna_kernels/%s.s.ref" % NAME).read().splitlines()
    hdr = [l for l in ref if l.startswith(";") and "@launch" not in l]
    txt = hdr + ["; @launch grid=(256,1,1) block=(512,1,1) lds=%d" % LDS_TOTAL,
                 '.amdgcn_target "amdgcn-amd-amdhsa--gfx950"', ".text",
                 ".globl %s_kernel" % NAME, ".p2align 8", ".type %s_kernel,@function" % NAME,
                 "%s_kernel:" % NAME]
    txt += generate(cfg)
    txt += ['.section .rodata,"a"', ".p2align 6", ".amdhsa_kernel %s_kernel" % NAME,
            "  .amdhsa_next_free_vgpr 256", "  .amdhsa_next_free_sgpr 102", "  .amdhsa_accum_offset 256",
            "  .amdhsa_group_segment_fixed_size 0", "  .amdhsa_kernarg_size 144", "  .amdhsa_user_sgpr_count 2",
            "  .amdhsa_user_sgpr_kernarg_segment_ptr 1", "  .amdhsa_system_sgpr_workgroup_id_x 1",
            ".end_amdhsa_kernel"]
    open(cfg.o, "w").write("\n".join(txt) + "\n")


if __name__ == "__main__":
    main()
```

```python
import sys, argparse

NAME = "concat_heads__ssm_conv_s4__ssm_conv_h3__prompt"

KS  = 9120
KC1 = 0
KC0 = 4576
UC1 = 8 * KS
UD  = 4224
UC0 = UC1 + UD
CS  = 8400
YST = UC1 + 8 * CS
YCS = 1088
YBUF = 8 * YCS
FLG = YST + 2 * YBUF
LDS_TOTAL = FLG + 32
TROW = 544

S_H, S_ROT, S_XCD, S_PC = 3, 4, 5, 6
P_U, P_ARE, P_AIM, P_BRE, P_BIM, P_CRE, P_CIM, P_LDT = 16, 18, 20, 22, 24, 26, 28, 30
P_DSK, P_Q, P_K, P_V, P_SHK, P_SSK, P_SSD, P_OUT = 32, 34, 36, 38, 40, 42, 44, 46
R_D0, R_V, R_Q, R_OUT, R_KROW, R_DD = 48, 52, 56, 60, 64, 68
R_PK = 92
S_C8, S_SC = 70, 68
S_ROW = [None, 72, 73, 74]
S_1M, S_2M, S_3M, S_4M, S_6M = 75, 76, 77, 78, 79
S_W, S_CG, S_CH, S_T0, S_T1, S_SELLO, S_SELHI, S_MASK, S_LB = 83, 84, 85, 86, 87, 88, 89, 90, 91
STAMP_REGS = [8, 10, 12, 14, 80, 100] + list(range(16, 48, 2))
MB = {0: "0", 1: "s%d" % S_1M, 2: "s%d" % S_2M, 3: "s%d" % S_3M, 4: "s%d" % S_4M, 6: "s%d" % S_6M}

V_LANE = 0
V_X0, V_X1, V_X2 = 1, 2, 3
V_PF = 4
V_FA, V_FW = 5, 6
V_A, V_B, V_YW, V_YW2 = 7, 8, 9, 10
V_FL = 12
V_YT = 16
V_RING = 20
NRING = 11
V_ACC = 64
V_AC = 128
NCACHE = 2
V_U1, V_U0A, V_U0B, V_YR, V_YR2 = 7, 8, 9, 10, 11
V_COL = 16
V_HALO = 20
V_QO, V_OO = 24, 26
V_DA = 28
V_W = 28
V_DB = 36
V_Q = 112
V_TB = 144
PF16, PF32, PFS = 20, 21, 22


class Em:
    def __init__(self):
        self.lines = []
        self.vm = []
        self.lg = []
        self.stamps = []
        self.extras = []
        self.xstep = 6
        self._cnt = 0

    def fork(self):
        f = Em()
        f.vm = list(self.vm)
        f.lg = list(self.lg)
        f.stamps = list(self.stamps)
        return f

    def __call__(self, s):
        self.lines.append("    " + s)
        if self.extras and s.startswith("v_") and not s.startswith("v_mfma"):
            self._cnt += 1
            if self._cnt >= self.xstep:
                self._cnt = 0
                x = self.extras.pop(0)
                ex, self.extras = self.extras, []
                x()
                self.extras = ex

    def flush_extras(self):
        ex, self.extras = self.extras, []
        for x in ex:
            x()

    def cut(self, lab):
        self("s_branch %s" % lab)
        self.lines.append("@CUT")
        self.label(lab)

    def label(self, s):
        self.lines.append(s + ":")

    def vmem(self, s, tag):
        self(s)
        self.vm.append(tag)

    def lds(self, s, tag=None):
        self(s)
        self.lg.append(tag)

    def _need(self, q, tags):
        idx = -1
        for i, t in enumerate(q):
            if t in tags:
                idx = i
        return idx

    def wait_vm(self, *tags):
        idx = self._need(self.vm, tags)
        if idx < 0:
            return
        n = len(self.vm) - 1 - idx
        assert n <= 63
        self("s_waitcnt vmcnt(%d)" % n)
        self.vm = self.vm[idx + 1:]

    def wait_lg(self, *tags):
        idx = self._need(self.lg, tags)
        if idx < 0:
            return False
        n = len(self.lg) - 1 - idx
        n = min(n, 15)
        self("s_waitcnt lgkmcnt(%d)" % n)
        self.lg = self.lg[len(self.lg) - n:] if n else []
        return True

    def wait_lg_all(self):
        if self.lg:
            self("s_waitcnt lgkmcnt(0)")
        self.lg = []

    def barrier(self):
        self.wait_lg_all()
        self("s_barrier")


_lab = [0]
STFLAG = [""]


def newlab(p):
    _lab[0] += 1
    return "%s%d" % (p, _lab[0])


def vr(b, n):
    return "v[%d:%d]" % (b, b + n - 1)


def srd(b):
    return "s[%d:%d]" % (b, b + 3)


def stamp(e, cfg, idx):
    if not cfg.stamps or len(e.stamps) >= len(STAMP_REGS):
        return
    r = STAMP_REGS[len(e.stamps)]
    e.stamps.append((idx, r))
    e("s_memtime s[%d:%d]" % (r, r + 1))


def finish(e, cfg):
    if cfg.stamps:
        stamp(e, cfg, 40)
        e("s_waitcnt vmcnt(0)")
        stamp(e, cfg, 41)
        T = V_FL
        e("s_memrealtime s[6:7]")
        e("s_load_dwordx2 s[0:1], s[0:1], 136")
        e("v_mov_b32 v%d, 0" % T)
        e("s_waitcnt lgkmcnt(0)")
        e("v_writelane_b32 v%d, s6, 63" % T)
        e("v_writelane_b32 v%d, s96, 62" % T)
        e("v_writelane_b32 v%d, s98, 0" % T)
        for idx, r in e.stamps:
            e("v_writelane_b32 v%d, s%d, %d" % (T, r, idx))
        e("s_lshl_b32 s%d, s2, 3" % S_T0)
        e("s_add_u32 s%d, s%d, s%d" % (S_T0, S_T0, S_W))
        e("s_lshl_b32 s%d, s%d, 8" % (S_T0, S_T0))
        e("v_lshlrev_b32 v%d, 2, v%d" % (V_X0, V_LANE))
        e("v_add_u32 v%d, s%d, v%d" % (V_X0, S_T0, V_X0))
        e("global_store_dword v%d, v%d, s[0:1]" % (V_X0, T))
    e("s_endpgm")


def srd_tail(e, r, nbytes):
    e("s_mov_b32 s%d, 0x%x" % (r + 2, nbytes))
    e("s_mov_b32 s%d, 0x20000" % (r + 3))


def srd_head(e, r, p):
    e("s_mov_b64 s[%d:%d], s[%d:%d]" % (r, r + 1, p, p + 1))


def unpack(e, dst, src, z):
    if z == 0:
        e("v_lshlrev_b32 v%d, 16, v%d" % (dst, src))
    else:
        e("v_and_b32 v%d, s%d, v%d" % (dst, S_MASK, src))


def flag_set(e, val):
    e("v_mov_b32 v%d, %d" % (V_X2, val))
    e.lds("ds_write_b32 v%d, v%d" % (V_FW, V_X2))


def flag_read(e):
    e.lds("ds_read_b128 %s, v%d" % (vr(V_FL, 4), V_FA), "flag")


def flag_eval(e, val):
    e("v_min3_u32 v%d, v%d, v%d, v%d" % (V_FL, V_FL, V_FL + 1, V_FL + 2))
    e("v_min_u32 v%d, v%d, v%d" % (V_FL, V_FL, V_FL + 3))
    e("s_nop 0")
    e("v_readfirstlane_b32 s%d, v%d" % (S_T0, V_FL))
    e("s_cmp_ge_u32 s%d, %d" % (S_T0, val))


def flag_check(e, val, sleep):
    ex, e.extras = e.extras, []
    ok, spin = newlab("L_ok"), newlab("L_spin")
    e.wait_lg("flag")
    flag_eval(e, val)
    e("s_cbranch_scc1 %s" % ok)
    e.label(spin)
    if sleep:
        e("s_sleep %d" % sleep)
    e("ds_read_b128 %s, v%d" % (vr(V_FL, 4), V_FA))
    e("s_waitcnt lgkmcnt(0)")
    flag_eval(e, val)
    e("s_cbranch_scc0 %s" % spin)
    e.label(ok)
    e.extras = ex


def col_row(e, dst, voff, rs, row, tag):
    so = S_ROW[row >> 1]
    so = "0" if so is None else "s%d" % so
    off = " offset:2048" if row & 1 else ""
    return lambda: e.vmem("buffer_load_dword v%d, v%d, %s, %s offen%s" % (dst, voff, srd(rs), so, off), tag)


def loads_B(e, i):
    tag = "D%d" % i
    b = V_DB + 19 * i
    l = [col_row(e, b + 3 + r, V_COL + i, R_D0, r, tag + "k") for r in range(8)]
    l += [col_row(e, b + r, V_HALO + i, R_D0, r, tag + "k") for r in range(3)]
    l += [col_row(e, b + 11 + r, V_COL + i, R_V, r, tag) for r in range(8)]
    return l


def loads_A(e, i):
    return [col_row(e, V_DA + 8 * i + r, V_COL + i, R_D0, r, "D%d" % i) for r in range(8)]


def loads_q(e, i):
    return [(lambda z=z: e.vmem("buffer_load_dwordx4 %s, v%d, %s, %s offen" % (vr(V_Q + 8 * i + 4 * z, 4), V_QO + z, srd(R_Q), MB[i]), "q%d" % i)) for z in range(2)]


def write_u(e, out, z, i, defer=False):
    adj = (3 - i) * 1024
    va = V_U0B if z else V_U0A
    if adj:
        e("v_add_u32 v%d, %d, v%d" % (V_X0 + z, adj, va))
        va = V_X0 + z
    ops = [lambda: e.lds("ds_write_b128 v%d, %s offset:%d" % (V_U1, vr(out, 4), adj + z * CS)),
           lambda: e.lds("ds_write2_b32 v%d, v%d, v%d offset0:0 offset1:1" % (va, out, out + 1)),
           lambda: e.lds("ds_write2_b32 v%d, v%d, v%d offset0:2 offset1:3" % (va, out + 2, out + 3))]
    if defer:
        e.extras, e.xstep, e._cnt = ops, 16, 12
    else:
        run(ops)


def halo_dpp(e, DK):
    for k in range(3):
        e("v_mov_b32_dpp v%d, v%d row_shr:4 row_mask:0xf bank_mask:0xf" % (DK + k, DK + 8 + k))


def process_B(e, i):
    DK = V_DB + 19 * i
    DV = DK + 11
    halo_dpp(e, DK)
    KU = V_TB
    R = V_TB + 12
    OUT = [V_TB + 20, V_TB + 24]
    for z in range(2):
        for k in range(11):
            unpack(e, KU + k, DK + k, z)
        for t in range(8):
            e("v_mul_f32 v%d, v%d, v%d" % (R + t, KU + t, V_W + 6 + z))
        for tap in (2, 1, 0):
            for t in range(8):
                e("v_fmac_f32 v%d, v%d, v%d" % (R + t, KU + t + 3 - tap, V_W + 2 * tap + z))
        for t in range(8):
            unpack(e, KU + t, DV + t, z)
        for t in range(8):
            e("v_mul_f32 v%d, v%d, v%d" % (R + t, R + t, KU + t))
        for d in range(4):
            e("v_cvt_pk_bf16_f32 v%d, v%d, v%d" % (OUT[z] + d, R + 7 - 2 * d, R + 6 - 2 * d))
        e.flush_extras()
        write_u(e, OUT[z], z, i, defer=(z == 0))


def process_B_pk(e, i, mid=None):
    DK = V_DB + 19 * i
    DV = DK + 11
    KU = V_TB + 28
    R = V_TB + 52
    OUT = [V_TB + 20, V_TB + 24]
    halo_dpp(e, DK)
    for k in range(11):
        for z in range(2):
            unpack(e, KU + 2 * k + z, DK + k, z)
    for t in range(8):
        e("v_pk_mul_f32 %s, %s, %s" % (vr(R + 2 * t, 2), vr(KU + 2 * t, 2), vr(V_W + 6, 2)))
    for tap in (2, 1, 0):
        for t in range(8):
            e("v_pk_fma_f32 %s, %s, %s, %s" % (vr(R + 2 * t, 2), vr(KU + 2 * (t + 3 - tap), 2), vr(V_W + 2 * tap, 2), vr(R + 2 * t, 2)))
    if mid:
        mid()
    for t in range(8):
        for z in range(2):
            unpack(e, KU + 2 * t + z, DV + t, z)
    for t in range(8):
        e("v_pk_mul_f32 %s, %s, %s" % (vr(R + 2 * t, 2), vr(R + 2 * t, 2), vr(KU + 2 * t, 2)))
    for z in range(2):
        for d in range(4):
            e("v_cvt_pk_bf16_f32 v%d, v%d, v%d" % (OUT[z] + d, R + 2 * (7 - 2 * d) + z, R + 2 * (6 - 2 * d) + z))
        write_u(e, OUT[z], z, i)


def process_A(e, i):
    base = V_DA + 8 * i
    OUT = [60, 64]
    for z in range(2):
        sel = S_SELHI if z else S_SELLO
        for d in range(4):
            e("v_perm_b32 v%d, v%d, v%d, s%d" % (OUT[z] + d, base + 6 - 2 * d, base + 7 - 2 * d, sel))
        write_u(e, OUT[z], z, i)


def epilogue(e, typ, i, zs=(0, 1)):
    TB = V_TB if typ == "B" else 60
    Y = [TB, TB + 4]
    T = TB + 8
    O = [TB + 24 + 8 * (i & 1), TB + 28 + 8 * (i & 1)]
    for z in zs:
        dst = Y[z] if typ == "B" else O[z]
        if i < 2:
            va, off, cs = V_YR, i * YBUF + 512 * z, YCS
        else:
            va, off, cs = V_YR2, (i - 2) * UD + 512 * z, CS
        e.lds("ds_read_b64_tr_b16 %s, v%d offset:%d" % (vr(dst, 2), va, off), "y%d" % z)
        e.lds("ds_read_b64_tr_b16 %s, v%d offset:%d" % (vr(dst + 2, 2), va, off + 4 * cs), "y%d" % z)
    for z in zs:
        if typ == "B":
            e.wait_vm("q%d" % i)
            q = V_Q + 8 * i + 4 * z
            for d in range(4):
                for x in range(2):
                    unpack(e, T + 2 * d + x, q + d, x)
            e.wait_lg("y%d" % z)
            for d in range(4):
                for x in range(2):
                    unpack(e, T + 8 + 2 * d + x, Y[z] + d, x)
            for k in range(8):
                e("v_mul_f32 v%d, v%d, v%d" % (T + k, T + k, T + 8 + k))
            for d in range(4):
                e("v_cvt_pk_bf16_f32 v%d, v%d, v%d" % (O[z] + d, T + 2 * d, T + 2 * d + 1))
        else:
            e.wait_lg("y%d" % z)
        e.vmem("buffer_store_dwordx4 %s, v%d, %s, %s offen%s" % (vr(O[z], 4), V_OO + z, srd(R_OUT), MB[2 * i], STFLAG[0]), "st")


def conv(e, cfg, prog, preloaded, seen0=0, wb=()):
    mf = []
    gates = {}
    yev = []
    marks = {}
    for k, it in enumerate(prog):
        if it[0] == "pass":
            _, c, pairs, gate = it
            marks[len(mf)] = k
            pairs = sorted(pairs, key=lambda pr: (pr[0] - pr[1], pr[1]))
            for s in range(8):
                for (p, r) in pairs:
                    q = p - r
                    a = ("C", c, q, s) if q < NCACHE else ("A", c, q, s, k)
                    b = ("B", c, r, s, k)
                    for f in (a, b):
                        gates.setdefault(f, gate)
                    mf.append((c, p, a, b))
        else:
            _, c, tiles, fv = it
            last = max(n for n, m in enumerate(mf) if m[0] == c and m[1] in tiles)
            yev.append([last, c, tiles, fv])
    reg, last_use, first_use, order = {}, {}, {}, []
    for n, (c, p, a, b) in enumerate(mf):
        for f in (b, a):
            last_use[f] = n
            if f not in first_use:
                first_use[f] = n
                if f[0] == "C":
                    reg[f] = V_AC + 64 * f[1] + 4 * (f[2] * 8 + f[3])
                    if f in preloaded:
                        continue
                order.append((f, 0))
                if f[0] == "B":
                    order.append((f, 1))
    slot_free_at = [-1] * NRING
    st = {"nxt": 0, "seen": seen0, "flagpend": None}
    when = []
    issued_at = {}

    def lds(text, tag, n):
        e.lds(text, tag)
        when.append(n)

    def sync_when():
        del when[:max(0, len(when) - len(e.lg))]
        while len(when) < len(e.lg):
            when.insert(0, -100)

    def try_issue(done, force=False):
        if st["nxt"] >= len(order):
            return 0
        f, h = order[st["nxt"]]
        if gates[f] > st["seen"]:
            return 0
        if not force and len(e.lg) + 1 > cfg.maxlg:
            return 0
        if f[0] != "C" and h == 0:
            cand = [i for i in range(NRING) if slot_free_at[i] < done]
            if not cand:
                assert not force, "ring too small"
                return 0
            i = min(cand, key=lambda i: slot_free_at[i])
            slot_free_at[i] = last_use[f]
            reg[f] = V_RING + 4 * i
        c = f[1]
        if f[0] == "B":
            off = 3640 - 512 * f[2] + 64 * f[3] + 4 * CS * c + 8 * h
            lds("ds_read_b64 %s, v%d offset:%d" % (vr(reg[f] + 2 * h, 2), V_B, off), f, done)
        else:
            lds("ds_read_b128 %s, v%d offset:%d" % (vr(reg[f], 4), V_A, 64 * (8 * f[2] + f[3]) + 4 * KS * c), f, done)
        st["nxt"] += 1
        return 1

    def needs_wait(n):
        return e._need(e.lg, (mf[n][2], mf[n][3])) >= 0

    def do_wait(n):
        idx = e._need(e.lg, (mf[n][2], mf[n][3]))
        if idx < 0:
            return
        sync_when()
        while idx + 1 < len(e.lg) and when[idx + 1] <= n - cfg.lat:
            idx += 1
        k = min(15, len(e.lg) - 1 - idx)
        e("s_waitcnt lgkmcnt(%d)" % k)
        e.lg = e.lg[len(e.lg) - k:] if k else []
        sync_when()

    gvals = sorted(set(gates.values()) - {0})
    gpos = {g: min(first_use[f] for f, h in order if gates[f] == g) for g in gvals}
    acc_init = set()
    misc = []

    def ystage(c, tiles, fv, at):
        if fv is not None:
            at -= 20
        for j in range(0, len(tiles), 2):
            sub = tiles[j:j + 2]
            for z, p in enumerate(sub):
                a = V_ACC + 32 * c + 4 * p
                misc.append(("v", lambda n, z=z, a=a: e("v_cvt_pk_bf16_f32 v%d, v%d, v%d" % (V_YT + 2 * z, a, a + 1)), at))
                misc.append(("v", lambda n, z=z, a=a: e("v_cvt_pk_bf16_f32 v%d, v%d, v%d" % (V_YT + 2 * z + 1, a + 2, a + 3)), at))
            for z, p in enumerate(sub):
                i = p >> 1
                if i < 2:
                    va, off = V_YW, i * YBUF + 512 * (p & 1) + 4 * YCS * c
                else:
                    va, off = V_YW2, (i - 2) * UD + 512 * (p & 1) + 4 * CS * c
                misc.append(("ds", lambda n, z=z, va=va, off=off: lds("ds_write_b64 v%d, %s offset:%d" % (va, vr(V_YT + 2 * z, 2), off), None, n), at))
        if fv is not None:
            misc.append(("v", lambda n: e("v_mov_b32 v%d, %d" % (V_X2, fv)), at))
            misc.append(("ds", lambda n: lds("ds_write_b32 v%d, v%d" % (V_FW, V_X2), None, n), at - 16))

    if seen0:
        sync_when()
        for _ in range(12):
            try_issue(0)
    for n, (c, p, a, b) in enumerate(mf):
        for g in gvals:
            if g > st["seen"]:
                if st["flagpend"] is None and n >= gpos[g] - cfg.glead - 6:
                    sync_when()
                    flag_read(e)
                    when.append(n)
                    st["flagpend"] = g
                if n >= gpos[g] - cfg.glead:
                    while misc:
                        misc.pop(0)[1](n)
                    flag_check(e, g, 0 if n == 0 else 1)
                    sync_when()
                    st["seen"] = g
                    st["flagpend"] = None
                    if n == 0:
                        for _ in range(12):
                            try_issue(n)
                break
        if n in marks and not (cfg.kstamps and marks[n] > 4):
            stamp(e, cfg, 10 + marks[n])
        if n in wb:
            lab = newlab("L_nowb")
            e("s_and_b32 s%d, s%d, %d" % (S_T1, S_CH, cfg.wbmask))
            e("s_cbranch_scc1 %s" % lab)
            e("buffer_wbl2 sc1")
            e.label(lab)
        while st["nxt"] < len(order) and first_use[order[st["nxt"]][0]] <= n:
            assert try_issue(n, True)
        do_wait(n)
        acc = V_ACC + 32 * c + 4 * p
        cc = vr(acc, 4) if (c, p) in acc_init else "0"
        acc_init.add((c, p))
        e("v_mfma_f32_16x16x32_bf16 %s, %s, %s, %s" % (vr(acc, 4), vr(reg[a], 4), vr(reg[b], 4), cc))
        while yev and n >= yev[0][0] + 8:
            _, yc, tiles, fv = yev.pop(0)
            ystage(yc, tiles, fv, n)
        def urgent():
            return st["nxt"] < len(order) and first_use[order[st["nxt"]][0]] <= n + 1 + cfg.lat
        nds = 0
        other = 1 if (n + 1 < len(mf) and needs_wait(n + 1)) else 0
        if misc and misc[0][0] == "ds" and not urgent():
            misc.pop(0)[1](n + 1); nds += 1
        elif try_issue(n + 1):
            nds += 1
        if nds and urgent() and try_issue(n + 1):
            nds += 1
        while misc and misc[0][0] == "v" and nds + other < 2:
            misc.pop(0)[1](n + 1); other += 1
        if misc and misc[0][2] + 24 < n:
            misc.pop(0)[1](n + 1)
    if yev:
        gap = len(mf) - 1 - max(y[0] for y in yev)
        k = 0
        while misc:
            misc.pop(0)[1](len(mf)); k += 1
        if 7 - gap - k >= 0:
            e("s_nop %d" % (7 - gap - k))
        for _, yc, tiles, fv in yev:
            ystage(yc, tiles, fv, len(mf))
    while misc:
        misc.pop(0)[1](len(mf))


def preload_cache(e, c):
    got = set()
    for s in range(8):
        for q in range(NCACHE):
            f = ("C", c, q, s)
            e.lds("ds_read_b128 %s, v%d offset:%d" % (vr(V_AC + 64 * c + 4 * (q * 8 + s), 4), V_A, 64 * (8 * q + s) + 4 * KS * c), f)
            got.add(f)
    return got


def set_pairs(i):
    r0, r1 = 2 * i, 2 * i + 1
    allp = [(p, r0) for p in range(r0, 8)] + [(p, r1) for p in range(r1, 8)]
    comp = [x for x in allp if x[0] <= r1]
    rest = [x for x in allp if x[0] > r1]
    return allp, comp, rest


RAW0, RAW1 = 60, 176
KT0, KT1, KT2 = 248, 252, 100
KXA, KXB, KXC, KXD, KZA, KSQ, KXE = 104, 105, 106, 107, 108, 109, 110
KVR, KVD, KVR2, KVG, KVS, KVU = 112, 113, 114, 116, 117, 118
_free = [0, 1, 2, 3, 5, 6, 7, 9, 10]
SLOT_OF = {8 + i: _free[i] for i in range(9)}
SLOT_OF.update({3: 4, 4: 8, 6: 12})


def kgen_addr(e):
    rows = []
    for g in range(4):
        rows += [8 + 2 * g, 9 + 2 * g, 10 + 2 * g, [3, 4, 6, 8][g]]
    nib = 0
    for i, h in enumerate(rows):
        nib |= SLOT_OF[h] << (4 * i)
    e("s_mov_b32 m0, s%d" % S_LB)
    e("s_mov_b32 s%d, 0x41000000" % S_C8)
    e("s_mov_b32 s%d, 0x43000000" % (S_C8 + 1))
    e("v_and_b32 v%d, 15, v%d" % (V_X0, V_LANE))
    e("v_mul_u32_u24 v%d, %d, v%d" % (KVR, TROW, V_X0))
    e("v_lshrrev_b32 v%d, 4, v%d" % (KVG, V_LANE))
    e("v_lshl_add_u32 v%d, v%d, 4, v%d" % (KVR, KVG, KVR))
    e("v_add_u32 v%d, s%d, v%d" % (KVR, S_LB, KVR))
    e("v_lshlrev_b32 v%d, 4, v%d" % (KXA, V_X0))
    e("v_add_u32 v%d, s%d, v%d" % (KXA, S_LB, KXA))
    e("s_mov_b32 s%d, 0x%x" % (S_T0, nib & 0xffffffff))
    e("s_mov_b32 s%d, 0x%x" % (S_T1, nib >> 32))
    e("v_lshlrev_b32 v%d, 2, v%d" % (V_X0, V_X0))
    e("v_lshrrev_b64 v[%d:%d], v%d, s[%d:%d]" % (KVR2, KVR2 + 1, V_X0, S_T0, S_T1))
    e("v_and_b32 v%d, 15, v%d" % (V_X0, KVR2))
    e("v_mul_u32_u24 v%d, %d, v%d" % (KVR2, TROW, V_X0))
    e("v_lshl_add_u32 v%d, v%d, 4, v%d" % (KVR2, KVG, KVR2))
    e("v_add_u32 v%d, s%d, v%d" % (KVR2, S_LB, KVR2))
    e("v_and_b32 v%d, 31, v%d" % (V_X0, V_LANE))
    e("v_min_u32 v%d, 28, v%d" % (V_X0, V_X0))
    e("v_lshlrev_b32 v%d, 4, v%d" % (V_X0, V_X0))
    e("v_lshrrev_b32 v%d, 5, v%d" % (V_X1, V_LANE))
    e("v_mul_u32_u24 v%d, %d, v%d" % (V_X2, KC0, V_X1))
    e("v_add3_u32 v%d, v%d, v%d, s%d" % (KZA, V_X0, V_X2, S_LB))
    e("v_lshl_add_u32 v%d, v%d, 9, v%d" % (KXB, KVG, KXA))
    e("v_lshl_add_u32 v%d, v%d, 8, v%d" % (KXD, V_X1, KXA))
    e("v_and_b32 v%d, 1, v%d" % (V_X0, KVG))
    e("v_lshl_add_u32 v%d, v%d, 3, v%d" % (KXD, V_X0, KXD))
    e("v_lshl_add_u32 v%d, v%d, 8, v%d" % (KXC, KVG, KXA))
    e("v_add_u32 v%d, 512, v%d" % (KXC, KXC))
    e("v_max_u32 v%d, v%d, v%d" % (KXC, KXC, KXB))
    e("v_and_b32 v%d, 1, v%d" % (V_X2, V_LANE))
    e("v_cmp_eq_u32 vcc, 1, v%d" % V_X2)
    e("s_mul_i32 s%d, s%d, %d" % (S_T0, S_H, KS))
    e("s_sub_u32 s%d, s%d, s%d" % (S_T0, S_T0, S_LB))
    e("v_mul_u32_u24 v%d, %d, v%d" % (KXE, TROW, KVG))
    e("v_add3_u32 v%d, v%d, v%d, s%d" % (KXE, KXE, KXA, S_T0))


def ktables(e, cfg, ms, RAW, tag, hooks, row0=0, tail=(), pk=False):
    F = 68
    w1, w128, l1, TM = [80, 81], [82, 83], [84, 85], [86, 87]
    CF = 88
    TT = 92
    HA = 120
    LB, AF = 184, 216
    nk = 4 * len(ms)
    LD, DS = RAW + 6, RAW + 7
    e("v_mov_b32 v%d, 0x3c00" % TM[0])
    for k in range(len(ms)):
        e.lds("ds_write_addtid_b32 v%d offset:%d" % (TM[0], 256 * k))
    e.wait_vm(tag)
    stamp(e, cfg, 1 if row0 == 0 else 4)
    e("v_lshlrev_b32 v%d, 16, v%d" % (LD, LD))
    e("v_mul_f32 v%d, 0x3fb8aa3b, v%d" % (LD, LD))
    e("v_exp_f32 v%d, v%d" % (LD, LD))
    for p in range(2):
        for m in ms:
            unpack(e, F + 2 * p + m, RAW + p, m)
    e("v_cvt_pk_bf16_f32 v%d, v%d, v%d" % (LD, LD, LD))
    e("v_and_b32 v%d, s%d, v%d" % (KVU, S_MASK, LD))
    e("v_lshlrev_b32 v%d, 16, v%d" % (KVD, DS))
    e("v_mul_f32 v%d, 0x3fb8aa3b, v%d" % (LD, KVU))
    e("v_mul_f32 v%d, 0.15915494, v%d" % (DS, KVU))
    if pk:
        e("v_pk_mul_f32 %s, %s, %s op_sel_hi:[1,0]" % (vr(F, 2), vr(F, 2), vr(LD, 2)))
        e("v_pk_mul_f32 %s, %s, %s op_sel:[0,1] op_sel_hi:[1,1]" % (vr(F + 2, 2), vr(F + 2, 2), vr(LD, 2)))
    else:
        for m in ms:
            e("v_mul_f32 v%d, v%d, v%d" % (F + m, LD, F + m))
            e("v_mul_f32 v%d, v%d, v%d" % (F + 2 + m, DS, F + 2 + m))
    EX, FR, CO, SI = TT, TT + 2, TT + 4, TT + 6

    def direct(mult, dst, conj):
        out = []
        if mult == 1:
            sx, sf = F, F + 2
        else:
            sx, sf = EX, FR
            if pk:
                sp = {8: "s[%d:%d] op_sel_hi:[1,0]" % (S_C8, S_C8 + 1), 128: "s[%d:%d] op_sel:[0,1] op_sel_hi:[1,1]" % (S_C8, S_C8 + 1)}[mult]
                out.append("v_pk_mul_f32 %s, %s, %s" % (vr(FR, 2), vr(F + 2, 2), sp))
                out.append("v_pk_mul_f32 %s, %s, %s" % (vr(EX, 2), vr(F, 2), sp))
            else:
                lit = {8: "0x41000000", 128: "0x43000000"}[mult]
                for m in ms:
                    out.append("v_mul_f32 v%d, %s, v%d" % (FR + m, lit, F + 2 + m))
                    out.append("v_mul_f32 v%d, %s, v%d" % (EX + m, lit, F + m))
        for m in ms:
            out.append("v_fract_f32 v%d, v%d" % (FR + m, sf + m))
        for m in ms:
            out.append("v_exp_f32 v%d, v%d" % (EX + m, sx + m))
        for m in ms:
            out.append("v_cos_f32 v%d, v%d" % (CO + m, FR + m))
        for m in ms:
            out.append("v_sin_f32 v%d, v%d" % (SI + m, FR + m))
        if pk:
            out.append("v_pk_mul_f32 %s, %s, %s" % (vr(CO, 2), vr(CO, 2), vr(EX, 2)))
            out.append("v_pk_mul_f32 %s, %s, %s" % (vr(SI, 2), vr(SI, 2), vr(EX, 2)))
        else:
            for m in ms:
                out.append("v_mul_f32 v%d, v%d, v%d" % (CO + m, EX + m, CO + m))
            for m in ms:
                out.append("v_mul_f32 v%d, v%d, v%d" % (SI + m, EX + m, SI + m))
        for m in ms:
            out.append("v_cvt_pk_f16_f32 v%d, v%d, %sv%d" % (dst[m], CO + m, "-" if conj else "", SI + m))
        return out

    for x in direct(8, l1, True):
        e(x)
    side = []
    g = Em()
    for p in range(2, 6):
        for m in ms:
            unpack(g, F + 2 * p + m, RAW + p, m)
    side += [x.strip() for x in g.lines]
    CR, CI = CF, CF + 2
    m0, m1 = ms[0], ms[-1]
    side.append("v_max3_f32 v%d, 0, v%d, v%d" % (KSQ, F + m0, F + m1))
    side.append("v_mul_f32 v%d, 0x45000000, v%d" % (KSQ, KSQ))
    side.append("v_exp_f32 v%d, v%d" % (KSQ, KSQ))
    if pk:
        side.append("v_pk_mul_f32 %s, %s, %s" % (vr(CR, 2), vr(F + 8, 2), vr(F + 4, 2)))
        side.append("v_pk_mul_f32 %s, %s, %s" % (vr(CI, 2), vr(F + 8, 2), vr(F + 6, 2)))
        side.append("v_pk_fma_f32 %s, %s, %s, %s neg_lo:[1,0,0] neg_hi:[1,0,0]" % (vr(CR, 2), vr(F + 10, 2), vr(F + 6, 2), vr(CR, 2)))
        side.append("v_pk_fma_f32 %s, %s, %s, %s" % (vr(CI, 2), vr(F + 10, 2), vr(F + 4, 2), vr(CI, 2)))
    else:
        for m in ms:
            side.append("v_mul_f32 v%d, v%d, v%d" % (CR + m, F + 8 + m, F + 4 + m))
            side.append("v_mul_f32 v%d, v%d, v%d" % (CI + m, F + 8 + m, F + 6 + m))
        for m in ms:
            side.append("v_fma_f32 v%d, -v%d, v%d, v%d" % (CR + m, F + 10 + m, F + 6 + m, CR + m))
            side.append("v_fmac_f32 v%d, v%d, v%d" % (CI + m, F + 10 + m, F + 4 + m))
    side.append("v_max_f32_e64 v%d, abs(v%d), abs(v%d)" % (KVS, CR + m0, CI + m0))
    if len(ms) == 2:
        side.append("v_max3_f32 v%d, v%d, abs(v%d), abs(v%d)" % (KVS, KVS, CR + 1, CI + 1))
    side.append("v_mul_f32 v%d, v%d, v%d" % (KVS, KVS, KSQ))
    d1 = direct(1, w1, False) + direct(128, w128, False)
    red = ["row_shr:1", "row_shr:2", "row_shr:4", "row_shr:8", "row_bcast:15 row_mask:0xa", "row_bcast:31 row_mask:0xc"]
    for k, mode in enumerate(red):
        side += d1[:2]
        d1 = d1[2:]
        rm = "" if "row_mask" in mode else " row_mask:0xf"
        side.append("v_max_f32_dpp v%d, v%d, v%d %s%s bank_mask:0xf" % (KVS, KVS, KVS, mode, rm))
    side.append(d1.pop(0))
    side.append("v_readlane_b32 s%d, v%d, 63" % (S_SC, KVS))
    side += d1[:2]
    d1 = d1[2:]
    side.append("s_lshr_b32 s%d, s%d, 23" % (S_SC, S_SC))
    side.append("s_max_u32 s%d, s%d, 30" % (S_SC, S_SC))
    side.append("s_min_u32 s%d, s%d, 250" % (S_SC, S_SC))
    side.append("s_sub_u32 s%d, s%d, 13" % (S_SC + 1, S_SC))
    side.append("s_lshl_b32 s%d, s%d, 23" % (S_SC + 1, S_SC + 1))
    side.append("s_sub_u32 s%d, 267, s%d" % (S_SC, S_SC))
    side.append("s_lshl_b32 s%d, s%d, 23" % (S_SC, S_SC))
    side.append("v_mul_f32 v%d, s%d, v%d" % (KVU, S_SC + 1, KVU))
    h0 = [HA, HA + 1]
    if pk:
        for r in (CR, CI):
            side.append("v_pk_mul_f32 %s, %s, s[%d:%d] op_sel_hi:[1,0]" % (vr(r, 2), vr(r, 2), S_SC, S_SC + 1))
    else:
        for m in ms:
            for r in (CR, CI):
                side.append("v_mul_f32 v%d, s%d, v%d" % (r + m, S_SC, r + m))
    for m in ms:
        side.append("v_cvt_pk_f16_f32 v%d, v%d, v%d" % (h0[m], CR + m, CI + m))
    side += d1

    def mfmas(acc):
        return [(lambda ks=ks: e("v_mfma_f32_16x16x32_f16 %s, %s, %s, %s" % (vr(acc, 4), vr(AF + 4 * ks, 4), vr(LB + 4 * ks, 4), "0" if ks == 0 else vr(acc, 4)))) for ks in range(nk)]

    nreg = [HA + 2]

    def new():
        r = nreg[0]
        nreg[0] = r + 2 if r + 2 < RAW1 else HA + 2
        return [r, r + 1]
    val = {("L", 1): l1, (0, 0): h0}
    tiles = []
    t = [(None, None, None, ("L", 1), 1)]
    for j in range(2, 16):
        t.append((("L", j), ("L", j - 1), l1, ("L", j), j))
    tiles.append((t, LB, KVR, None))
    t = [(None, None, None, (0, 0), 0)]
    for y in range(1, 8):
        t.append(((0, y), (0, y - 1), w1, (0, y), y))
    for y in range(8):
        t.append(((1, y), (0, y), w128, (1, y), 8 + y))
    tiles.append((t, AF, KVR, KT0))
    t = []
    for h in (2, 3):
        for i, y in enumerate((0, 2, 4, 6)):
            t.append(((h, y), (h - 1, y), w128, (h, y), 4 * (h - 2) + i))
    for h in range(4, 8):
        for i, y in enumerate((0, 4)):
            t.append(((h, y), (h - 1, y), w128, (h, y), 8 + 2 * (h - 4) + i))
    tiles.append((t, AF, KVR, KT1))
    t = [((h, 0), (h - 1, 0), w128, (h, 0), SLOT_OF[h]) for h in range(8, 17)]
    tiles.append((t, AF, KVR2, KT2))
    ldsq, mq = [], []
    rowno = row0
    per = -(-len(side) // 14)
    pend_tag = None
    bud = (3 * len(ms) + 1) // 2
    for ti, (t, fdst, fva, acc) in enumerate(tiles):
        for ri, (d, sr, fac, key, slot) in enumerate(t):
            if d is not None:
                val[d] = new()
                for m in ms:
                    e("v_pk_mul_f16 v%d, v%d, v%d op_sel_hi:[0,1]" % (TM[m], val[sr][m], fac[m]))
                budget = bud
                if ldsq:
                    c, fn = ldsq.pop(0); fn(); budget -= c
                for m in ms:
                    e("v_pk_fma_f16 v%d, v%d, v%d, v%d op_sel:[1,1,0] op_sel_hi:[1,0,1] neg_lo:[0,1,0]" % (val[d][m], val[sr][m], fac[m], TM[m]))
                if ti == 0:
                    for x in side[:per]:
                        e(x)
                    side = side[per:]
                while ldsq and budget > 0:
                    c, fn = ldsq.pop(0); fn(); budget -= c
                if pend_tag and not any(c == 2 for c, _ in ldsq) and ri >= cfg.kmf:
                    e.wait_lg(pend_tag[0])
                    mq = mfmas(pend_tag[1])
                    pend_tag = None
                for _ in range(len(ms)):
                    if mq:
                        mq.pop(0)()
            for k, m in enumerate(ms):
                ldsq.append((1, lambda m=m, k=k, key=key, slot=slot: e.lds("ds_write_addtid_b32 v%d offset:%d" % (val[key][m], slot * TROW + 256 * k))))
            rowno += 1
            if cfg.kstamps and rowno in (15, 31, 47, 115, 131, 147):
                stamp(e, cfg, 42 + (15, 31, 47, 115, 131, 147).index(rowno))
            for fn in hooks.get(rowno, []):
                fn()
        if pend_tag:
            while any(c == 2 for c, _ in ldsq):
                ldsq.pop(0)[1]()
            e.wait_lg(pend_tag[0])
            mq = mfmas(pend_tag[1])
            pend_tag = None
        while mq:
            if ldsq:
                ldsq.pop(0)[1]()
            mq.pop(0)()
        tg = "t%d" % (ti - 1)
        for ks in range(nk):
            ldsq.append((2, lambda ks=ks, fdst=fdst, fva=fva, tg=tg: e.lds("ds_read_b128 %s, v%d offset:%d" % (vr(fdst + 4 * ks, 4), fva, 64 * ks), tg)))
        if acc is not None and ti < 3:
            pend_tag = (tg, acc)
    run([fn for c, fn in ldsq])
    run(tail)
    for k in range(4):
        e("v_mov_b32 v%d, 0" % (68 + k))
    for k in range(8):
        e("v_mul_f32 v%d, v%d, v%d" % (KT0 + k, KVU, KT0 + k))
    e.wait_lg("t2")
    run(mfmas(KT2))
    stamp(e, cfg, 5 if row0 == 0 else 9)


def kexpand(e, cfg, t2fix, sid):
    T0, T1, T2 = KT0, KT1, KT2
    XA, XB, XC, XD = KXA, KXB, KXC, KXD
    N = 76
    C = 132
    e.lds("ds_write_b128 v%d, %s" % (KZA, vr(68, 4)))

    def nxt(lst):
        for n, a, b in lst:
            e("v_mov_b32_dpp v%d, v%d row_ror:15 row_mask:0xf bank_mask:0xf" % (n, b))
        e("s_nop 1")
        for n, a, b in lst:
            e("v_mov_b32_dpp v%d, v%d row_shl:1 row_mask:0xf bank_mask:0xf" % (n, a))

    def pk(d, lo, hi):
        e("v_cvt_pk_bf16_f32 v%d, v%d, v%d" % (d, lo, hi))

    a, b, c, d = T1, T1 + 1, T1 + 2, T1 + 3
    C4 = C
    pk(C4, T0, T0 + 1); pk(C4 + 1, T0 + 2, T0 + 3); pk(C4 + 2, T0 + 1, T0 + 2)
    e.lds("ds_write_b64 v%d, %s offset:%d" % (XD, vr(C4, 2), KC1 + 448))
    C2 = C + 4
    C3 = C + 12
    nxt([(N + 1, a, c)])
    pk(C2, a, a); pk(C2 + 4, a, a)
    e("s_mov_b32 exec_hi, 0")
    pk(C2 + 1, b, c); pk(C2 + 2, c, c)
    pk(C2 + 5, a, b); pk(C2 + 6, c, c); pk(C2 + 7, c, d)
    e("s_not_b64 exec, exec")
    pk(C2 + 1, a, b); pk(C2 + 2, b, b); pk(C2 + 3, N + 1, N + 1)
    pk(C2 + 5, a, a); pk(C2 + 6, b, b); pk(C2 + 7, b, N + 1)
    e("s_mov_b64 exec, -1")
    e.lds("ds_write_b128 v%d, %s offset:%d" % (XC, vr(C2 + 4, 4), KC0 + 448))
    e.lds("ds_write_b16 v%d, v%d offset:%d" % (XD, C4, KC0 + 450))
    e.lds("ds_write_b32 v%d, v%d offset:%d" % (XD, C4 + 2, KC0 + 452))
    e.lds("ds_write_b16_d16_hi v%d, v%d offset:%d" % (XD, C4 + 1, KC0 + 456))
    pk(C3, c, c); pk(C3 + 1, c, d); pk(C3 + 2, d, d)
    pk(C3 + 4, c, c); pk(C3 + 5, c, c); pk(C3 + 6, d, d)
    t2fix()
    nxt([(N, a, T2 + 3), (N + 2, c, T2 + 3)])
    e("s_mov_b32 exec_hi, 0")
    pk(C2 + 3, d, N)
    e("s_not_b64 exec, exec")
    pk(C3 + 3, N + 2, N + 2); pk(C3 + 7, d, N + 2)
    e.lds("ds_write_b128 v%d, %s offset:%d" % (XB, vr(C3, 4), KC1 + 448 + 256))
    e.lds("ds_write_b128 v%d, %s offset:%d" % (XB, vr(C3 + 4, 4), KC0 + 448 + 256))
    e("s_mov_b64 exec, -1")
    e.lds("ds_write_b128 v%d, %s offset:%d" % (XC, vr(C2, 4), KC1 + 448))
    C5 = C + 20
    nxt([(N + z, T2 + z, T2 + z + 1) for z in range(2)])
    for z in range(2):
        v0 = T2 + z
        n0 = N + z
        s = N + 2 + z
        e("v_cndmask_b32 v%d, v%d, v%d, vcc" % (s, v0, n0))
        c1 = C5 + 8 * z
        c0 = c1 + 4
        pk(c1, v0, v0); pk(c1 + 1, v0, v0); pk(c1 + 2, s, n0); pk(c1 + 3, n0, n0)
        e.lds("ds_write_b128 v%d, %s offset:%d" % (XB, vr(c1, 4), KC1 + 448 + 256 * (8 + z)))
        pk(c0, v0, v0); pk(c0 + 1, v0, v0); pk(c0 + 2, v0, s); pk(c0 + 3, n0, n0)
        e.lds("ds_write_b128 v%d, %s offset:%d" % (XB, vr(c0, 4), KC0 + 448 + 256 * (8 + z)))
    stamp(e, cfg, sid)


def setup_flags(e):
    e("s_mov_b32 s%d, 0xffff0000" % S_MASK)
    e("s_mul_i32 s%d, s%d, %d" % (S_LB, S_W, KS))
    e("s_lshl_b32 s%d, s%d, 2" % (S_T0, S_W))
    e("s_add_u32 s%d, s%d, %d" % (S_T1, S_T0, FLG))
    e("v_mov_b32 v%d, s%d" % (V_FW, S_T1))
    e("s_and_b32 s%d, s%d, 16" % (S_T0, S_T0))
    e("s_sub_u32 s%d, %d, s%d" % (S_T0, FLG + 16, S_T0))
    e("v_mov_b32 v%d, s%d" % (V_FA, S_T0))
    e("v_mov_b32 v%d, 0" % V_X2)
    e.lds("ds_write_b32 v%d, v%d" % (V_FW, V_X2))
    e.barrier()


def karg_wait(e, cfg):
    stamp(e, cfg, 7)
    e("s_waitcnt lgkmcnt(0)")
    stamp(e, cfg, 8)


def setup_M(e):
    L = V_LANE
    e("v_and_b32 v%d, 1, v%d" % (V_X2, L))
    e("v_xor_b32 v%d, 1, v%d" % (V_X2, V_X2))
    e("v_and_b32 v%d, 48, v%d" % (V_X1, L))
    e("v_mul_u32_u24 v%d, %d, v%d" % (V_A, KC0, V_X2))
    e("v_bfe_u32 v%d, v%d, 1, 3" % (V_X0, L))
    e("v_lshl_add_u32 v%d, v%d, 6, v%d" % (V_A, V_X0, V_A))
    e("v_add3_u32 v%d, v%d, v%d, s%d" % (V_A, V_A, V_X1, S_LB))
    e("s_lshl_b32 s%d, s%d, 2" % (S_T0, S_W))
    e("s_and_b32 s%d, s%d, 8" % (S_T0, S_T0))
    e("s_add_u32 s%d, s%d, %d" % (S_T0, S_T0, UD))
    e("v_mul_u32_u24 v%d, s%d, v%d" % (V_B, S_T0, V_X2))
    e("v_lshlrev_b32 v%d, 3, v%d" % (V_X0, V_X0))
    e("v_sub_u32 v%d, v%d, v%d" % (V_B, V_B, V_X0))
    e("s_mul_i32 s%d, s%d, %d" % (S_T1, S_W, CS))
    e("s_add_u32 s%d, s%d, %d" % (S_T1, S_T1, UC1))
    e("v_add3_u32 v%d, v%d, v%d, s%d" % (V_B, V_B, V_X1, S_T1))
    e("v_and_b32 v%d, 31, v%d" % (V_X0, L))
    e("v_min_u32 v%d, 14, v%d" % (V_X0, V_X0))
    e("v_lshlrev_b32 v%d, 2, v%d" % (V_X0, V_X0))
    e("v_lshrrev_b32 v%d, 5, v%d" % (V_X1, L))
    e("s_add_u32 s%d, s%d, -4" % (S_T0, S_T0))
    e("v_mul_u32_u24 v%d, s%d, v%d" % (V_X1, S_T0, V_X1))
    e("v_add3_u32 v%d, v%d, v%d, s%d" % (V_X0, V_X0, V_X1, S_T1))
    e("v_mov_b32 v%d, 0" % V_X1)
    e.lds("ds_write_b32 v%d, v%d offset:4096" % (V_X0, V_X1))
    e.lds("ds_write_b32 v%d, v%d offset:%d" % (V_X0, V_X1, 4096 + 4 * CS))
    e("v_lshlrev_b32 v%d, 3, v%d" % (V_YW, L))
    e("s_add_u32 s%d, s%d, 3072" % (S_T1, S_T1))
    e("v_add_u32 v%d, s%d, v%d" % (V_YW2, S_T1, V_YW))
    e("s_mul_i32 s%d, s%d, %d" % (S_T0, S_W, YCS))
    e("s_add_u32 s%d, s%d, %d" % (S_T0, S_T0, YST))
    e("v_add_u32 v%d, s%d, v%d" % (V_YW, S_T0, V_YW))


def setup_H_col(e):
    L = V_LANE
    for i in range(1, 4):
        e("s_movk_i32 s%d, %d" % (S_ROW[i], 4096 * i))
    for mb in (1, 2, 3, 4, 6):
        e("s_mov_b32 %s, 0x%x" % (MB[mb], mb << 20))
    e("v_lshrrev_b32 v%d, 2, v%d" % (V_X0, L))
    e("v_lshlrev_b32 v%d, 14, v%d" % (V_COL, V_X0))
    e("v_and_b32 v%d, 3, v%d" % (V_X1, L))
    e("v_lshl_add_u32 v%d, v%d, 2, v%d" % (V_COL, V_X1, V_COL))
    e("s_lshl_b32 s%d, s%d, 18" % (S_T0, S_H))
    e("s_lshl_b32 s%d, s%d, 4" % (S_T1, S_CG))
    e("s_add_u32 s%d, s%d, s%d" % (S_T0, S_T0, S_T1))
    e("v_add_u32 v%d, s%d, v%d" % (V_COL, S_T0, V_COL))
    for i in range(1, 4):
        e("v_add_u32 v%d, %s, v%d" % (V_COL + i, MB[i], V_COL))


def setup_H(e, typ):
    L = V_LANE
    e("v_lshrrev_b32 v%d, 2, v%d" % (V_X0, L))
    e("v_and_b32 v%d, 3, v%d" % (V_X1, L))
    e("v_mul_u32_u24 v%d, %d, v%d" % (V_U1, 2 * CS, V_X1))
    e("v_lshlrev_b32 v%d, 4, v%d" % (V_X2, V_X0))
    e("v_sub_u32 v%d, v%d, v%d" % (V_U1, V_U1, V_X2))
    e("s_lshl_b32 s%d, s%d, 8" % (S_T0, S_H))
    e("s_sub_u32 s%d, %d, s%d" % (S_T0, UC1 + 4080 - 3072, S_T0))
    e("v_add_u32 v%d, s%d, v%d" % (V_U1, S_T0, V_U1))
    e("v_and_b32 v%d, 1, v%d" % (V_X2, L))
    e("v_lshl_add_u32 v%d, v%d, 3, v%d" % (V_U0A, V_X2, V_U1))
    e("v_add_u32 v%d, %d, v%d" % (V_U0A, UD - 4, V_U0A))
    e("v_add_u32 v%d, %d, v%d" % (V_U0B, CS, V_U0A))
    e("v_lshl_add_u32 v%d, v%d, 1, v%d" % (V_X0, V_X0, V_X2))
    e("v_bfe_u32 v%d, v%d, 1, 1" % (V_X2, L))
    e("v_lshl_add_u32 v%d, v%d, 5, v%d" % (V_X0, V_X2, V_X0))
    e("s_lshl_b32 s%d, s%d, 6" % (S_T0, S_H))
    e("v_add_u32 v%d, s%d, v%d" % (V_X0, S_T0, V_X0))
    e("s_lshl_b32 s%d, s%d, 4" % (S_T1, S_CG))
    if typ == "B":
        e("v_lshlrev_b32 v%d, 11, v%d" % (V_QO, V_X0))
        e("v_add_u32 v%d, s%d, v%d" % (V_QO, S_T1, V_QO))
        e("v_add_u32 v%d, 0x80000, v%d" % (V_QO + 1, V_QO))
        e("s_add_u32 s%d, s%d, 2048" % (S_T1, S_T1))
    e("v_lshlrev_b32 v%d, 12, v%d" % (V_OO, V_X0))
    e("v_add_u32 v%d, s%d, v%d" % (V_OO, S_T1, V_OO))
    e("v_add_u32 v%d, %s, v%d" % (V_OO + 1, MB[1], V_OO))
    e("v_and_b32 v%d, 48, v%d" % (V_X2, L))
    e("v_lshlrev_b32 v%d, 1, v%d" % (V_X2, V_X2))
    e("v_lshl_add_u32 v%d, v%d, 3, v%d" % (V_X2, V_X1, V_X2))
    e("v_bfe_u32 v%d, v%d, 2, 2" % (V_X0, L))
    e("v_mul_u32_u24 v%d, %d, v%d" % (V_YR, YCS, V_X0))
    e("v_mul_u32_u24 v%d, %d, v%d" % (V_YR2, CS, V_X0))
    e("s_lshl_b32 s%d, s%d, 7" % (S_T0, S_H))
    e("s_add_u32 s%d, s%d, %d" % (S_T1, S_T0, YST))
    e("v_add3_u32 v%d, v%d, v%d, s%d" % (V_YR, V_YR, V_X2, S_T1))
    e("s_add_u32 s%d, s%d, %d" % (S_T1, S_T0, UC1 + 3072))
    e("v_add3_u32 v%d, v%d, v%d, s%d" % (V_YR2, V_YR2, V_X2, S_T1))


def run(l):
    for x in l:
        x()


def set_prog(cfg, i, gate):
    allp, comp, rest = set_pairs(i)
    t = [2 * i, 2 * i + 1]
    if cfg.split[i] == "1" and rest:
        return [("pass", 0, comp, gate), ("y", 0, t, None), ("pass", 1, comp, gate), ("y", 1, t, i + 1),
                ("pass", 0, rest, gate), ("pass", 1, rest, gate)]
    if cfg.split[i] == "2" and rest:
        return [("pass", 0, allp, gate), ("y", 0, t, None), ("pass", 1, comp, gate), ("y", 1, t, i + 1),
                ("pass", 1, rest, gate)]
    return [("pass", 0, allp, gate), ("y", 0, t, None), ("pass", 1, allp, gate), ("y", 1, t, i + 1)]


class KPrep:
    def __init__(self, e, base, c=0, A=None):
        self.e, self.KD, self.OUT, self.PV, self.DD, self.T, self.A = e, base, base + 16, base + 32, base + 36, base + 37, base + 40
        self.c = c
        if A is not None:
            self.A = A

    def addr(self):
        e, A = self.e, self.A
        e("v_lshlrev_b32 v%d, 4, v%d" % (A, V_LANE))
        e("v_lshl_add_u32 v%d, s%d, 12, v%d" % (A + 1, S_CH, A))
        e("s_lshl_b32 s%d, s%d, 1" % (S_T0, S_CH))
        e("v_lshlrev_b32 v%d, 12, v%d" % (A + 2, V_LANE))
        e("v_add_u32 v%d, s%d, v%d" % (A + 2, S_T0, A + 2))
        srd_tail(e, R_KROW, 0x400000)
        srd_tail(e, R_DD, 2048)

    def heads(self):
        srd_head(self.e, R_KROW, P_SSK)
        srd_head(self.e, R_DD, P_SSD)

    def issue(self):
        e = self.e
        for i in range(4):
            e.vmem("buffer_load_dwordx4 %s, v%d, %s, %s offen offset:%d" % (vr(self.KD + 4 * i, 4), self.A + 1, srd(R_KROW), "s%d" % S_PC if self.c else "0", 1024 * i), "K%d" % self.c)
        e.vmem("buffer_load_ushort v%d, v%d, %s, 0 offen offset:%d" % (self.DD, self.A + 2, srd(R_DD), 8 * self.c), "K%d" % self.c)

    def zero(self, both=None):
        e, A, Z = self.e, self.A, self.OUT
        e("v_add_u32 v%d, s%d, v%d" % (A, S_LB, A))
        for i in range(4):
            e("v_mov_b32 v%d, 0" % (Z + i))
        e("v_mov_b32 v%d, 0" % self.PV)
        e("v_and_b32 v%d, 31, v%d" % (V_X0, V_LANE))
        e("v_min_u32 v%d, 27, v%d" % (V_X0, V_X0))
        e("v_lshlrev_b32 v%d, 4, v%d" % (V_X0, V_X0))
        e("v_lshrrev_b32 v%d, 5, v%d" % (V_X2, V_LANE))
        e("v_mul_u32_u24 v%d, %d, v%d" % (V_X2, KC0, V_X2))
        e("v_add3_u32 v%d, v%d, v%d, s%d" % (V_X0, V_X0, V_X2, S_LB))
        e.lds("ds_write_b128 v%d, %s" % (V_X0, vr(Z, 4)))
        if both:
            e.lds("ds_write_b128 v%d, %s offset:%d" % (V_X0, vr(Z, 4), 4 * KS))
            e("v_mov_b32 v%d, 0" % both.PV)
            e("s_movk_i32 s%d, 0x4000" % S_PC)

    def finish(self):
        e, KD, PV, DD, T, A = self.e, self.KD, self.PV, self.DD, self.T, self.A
        e.wait_vm("K%d" % self.c)
        for i in range(1, 4):
            e("v_mov_b32_dpp v%d, v%d wave_ror:1 row_mask:0xf bank_mask:0xf" % (PV + i, KD + 4 * i - 1))
        e("v_lshlrev_b32 v%d, 16, v%d" % (DD, DD))
        e("v_lshlrev_b32 v%d, 16, v%d" % (T, KD))
        for i in range(4):
            e("v_mov_b32_dpp v%d, v%d wave_shr:1 row_mask:0xf bank_mask:0xf" % (PV + i, KD + 4 * i + 3))
        e("v_and_b32 v%d, s%d, v%d" % (T + 1, S_MASK, KD))
        e("v_add_f32 v%d, v%d, v%d" % (T, T, DD))
        e("v_cvt_pk_bf16_f32 v%d, v%d, v%d" % (KD, T, T + 1))
        for i in range(4):
            k = KD + 4 * i
            o = self.OUT + 4 * i
            e.lds("ds_write_b128 v%d, %s offset:%d" % (A, vr(k, 4), KC1 + 448 + 1024 * i + 4 * KS * self.c))
            e("v_alignbit_b32 v%d, v%d, v%d, 16" % (o, k, PV + i))
            for d in range(1, 4):
                e("v_alignbit_b32 v%d, v%d, v%d, 16" % (o + d, k + d, k + d - 1))
            e.lds("ds_write_b128 v%d, %s offset:%d" % (A, vr(o, 4), KC0 + 448 + 1024 * i + 4 * KS * self.c))


def main_prog(cfg, ev, n0):
    S = [set_pairs(i) for i in range(4)]
    g = lambda *x: max(ev[k] for k in x)
    D = lambda i: ["D%d" % k for k in range(i + 1)]
    prog = []
    for i in range(n0):
        prog += [("pass", 0, S[i][0], g(*D(i))), ("y", 0, [2 * i, 2 * i + 1], None)]
    for i in range(n0):
        gi = g("K1", *D(n0 - 1))
        if cfg.split[i] == "0":
            prog += [("pass", 1, S[i][0], gi), ("y", 1, [2 * i, 2 * i + 1], i + 1)]
            continue
        prog += [("pass", 1, S[i][1], gi), ("y", 1, [2 * i, 2 * i + 1], i + 1)]
        if S[i][2]:
            prog += [("pass", 1, S[i][2], gi)]
    for i in range(n0, 4):
        prog += set_prog(cfg, i, g("K1", *D(i)))
    return prog


def prog_B_M(e, cfg):
    kp = KPrep(e, 64)
    if cfg.bpf == 2:
        pf_setup(e)
        karg_wait(e, cfg)
        for p in (P_K, P_V):
            e.vmem("global_load_dword v%d, v%d, s[%d:%d]" % (V_PF, PF16, p, p + 1), "pf")
        e.cut("L_BM_body")
        kp.addr()
        kp.heads()
    else:
        kp.addr()
        karg_wait(e, cfg)
        kp.heads()
        kp.issue()
        e.cut("L_BM_body")
    setup_flags(e)
    kp1 = KPrep(e, 20, 1, kp.A) if cfg.mk1 else None
    kp.zero(kp1)
    setup_M(e)
    if cfg.bpf == 2:
        e.wait_vm("pf")
        stamp(e, cfg, 4)
        kp.issue()
    if cfg.mk1 == 1:
        kp1.issue()
    e.wait_vm("K0")
    stamp(e, cfg, 1)
    if cfg.mk1 == 2:
        kp1.issue()
    kp.finish()
    pre = preload_cache(e, 0)
    if cfg.mk1:
        e.wait_vm("K1")
        stamp(e, cfg, 2)
        kp1.finish()
        pre |= preload_cache(e, 1)
    stamp(e, cfg, 3)
    e("s_setprio %d" % cfg.mprioB)
    conv(e, cfg, main_prog(cfg, cfg.bev, 1), pre)
    finish(e, cfg)


def prog_B_H(e, cfg):
    L_ = V_LANE
    if cfg.bpf == 1:
        pf_setup(e)
        karg_wait(e, cfg)
        for p in (P_K, P_V):
            e.vmem("global_load_dword v%d, v%d, s[%d:%d]" % (V_PF, PF16, p, p + 1), "pf")
    for i in range(1, 4):
        e("s_movk_i32 s%d, %d" % (S_ROW[i], 4096 * i))
    e("v_lshrrev_b32 v%d, 2, v%d" % (V_X0, L_))
    e("v_lshlrev_b32 v%d, 14, v%d" % (V_COL, V_X0))
    e("v_and_b32 v%d, 3, v%d" % (V_X1, L_))
    e("v_lshl_add_u32 v%d, v%d, 2, v%d" % (V_COL, V_X1, V_COL))
    e("s_lshl_b32 s%d, s%d, 18" % (S_T0, S_H))
    e("s_lshl_b32 s%d, s%d, 4" % (S_T1, S_CG))
    e("s_add_u32 s%d, s%d, s%d" % (S_T0, S_T0, S_T1))
    e("v_add_u32 v%d, s%d, v%d" % (V_COL, S_T0, V_COL))
    e("v_lshlrev_b32 v%d, 4, v%d" % (V_X1, V_X1))
    e("s_lshl_b32 s%d, s%d, 6" % (S_T1, S_CG))
    e("v_add_u32 v%d, s%d, v%d" % (V_X1, S_T1, V_X1))
    srd_tail(e, R_D0, 0x400000)
    srd_tail(e, R_V, 0x400000)
    if cfg.bpf != 1:
        karg_wait(e, cfg)
    srd_head(e, R_D0, P_K)
    srd_head(e, R_V, P_V)
    WR = V_TB
    L = [loads_B(e, i) for i in range(4)]
    Qs = [loads_q(e, i) for i in range(4)]
    e.vmem("global_load_dwordx4 %s, v%d, s[%d:%d]" % (vr(WR, 4), V_X1, P_SHK, P_SHK + 1), "W")
    run(L[0][:8])
    e.cut("L_BH_body")
    setup_flags(e)
    for mb in (1, 2, 3, 4, 6):
        e("s_mov_b32 %s, 0x%x" % (MB[mb], mb << 20))
    for i in range(1, 4):
        e("v_add_u32 v%d, %s, v%d" % (V_COL + i, MB[i], V_COL))
    for i in range(4):
        e("v_subrev_u32 v%d, 6144, v%d" % (V_HALO + i, V_COL + i))
    e("v_and_b32 v%d, 0x0fffffff, v%d" % (V_HALO, V_HALO))
    e("v_and_b32 v%d, 12, v%d" % (V_X2, V_LANE))
    for i in range(4):
        e("v_lshl_add_u32 v%d, v%d, 27, v%d" % (V_HALO + i, V_X2, V_HALO + i))
    srd_tail(e, R_Q, 0x400000)
    srd_tail(e, R_OUT, 0x800000)
    srd_head(e, R_Q, P_Q)
    srd_head(e, R_OUT, P_OUT)
    setup_H(e, "B")
    kp = KPrep(e, 212)
    if not cfg.mk1:
        kp.addr()
        kp.heads()
        kp.zero()
    run(L[0][8:])
    stamp(e, cfg, 6)
    e.wait_vm("W")
    for z in range(2):
        for tap in range(4):
            unpack(e, V_W + 2 * tap + z, WR + 2 * z + (tap >> 1), tap & 1)
    pos = [19, 0, 0, 0]
    for x in cfg.bh.split(","):
        if x == "k":
            kp.issue()
            continue
        if x == "K":
            kp.finish()
            flag_set(e, cfg.bev["K1"])
            stamp(e, cfg, 2)
            continue
        i = int(x[1])
        if x[0] == "L":
            n = int(x[3:]) if len(x) > 2 else 19
            run(L[i][pos[i]:n])
            pos[i] = n
        elif x[0] == "W":
            assert pos[i] == 19
            e.wait_vm("D%d" % i)
            stamp(e, cfg, 20 + i)
            if i == 0:
                e("s_setprio 2")
        elif x[0] == "P":
            assert pos[i] == 19
            if i == 0:
                n = int(x[3:]) if len(x) > 2 else 0
                e.wait_vm("D0k")
                e("s_setprio 2")

                def mid():
                    run(L[1][pos[1]:n])
                    pos[1] = max(pos[1], n)
                    e.wait_vm("D0")
                    stamp(e, cfg, 20)
                process_B_pk(e, 0, mid)
            else:
                e.wait_vm("D%d" % i)
                process_B(e, i)
            flag_set(e, cfg.bev["D%d" % i])
            stamp(e, cfg, 10 + i)
        elif x[0] == "q":
            run(Qs[i])
        elif x[0] == "E":
            flag_read(e)
            flag_check(e, i + 1, 1)
            stamp(e, cfg, 30 + i)
            epilogue(e, "B", i)
    finish(e, cfg)


def par_loads(e, raw, tag, c):
    e.vmem("global_load_ushort v%d, v%d, s[%d:%d] offset:%d" % (raw + 6, V_X1, P_LDT, P_LDT + 1, 8 * c), tag)
    for i, p in enumerate((P_ARE, P_AIM, P_BRE, P_BIM, P_CRE, P_CIM)):
        e.vmem("global_load_dword v%d, v%d, s[%d:%d] offset:%d" % (raw + i, V_X0, p, p + 1, 1024 * c), tag)
    e.vmem("buffer_load_ushort v%d, v%d, %s, 0 offen offset:%d" % (raw + 7, V_X2, srd(R_DD), 8 * c), tag)


def prog_A_common(e, cfg):
    e("s_and_b32 s%d, s%d, %d" % (S_T1, S_CH, -5 if cfg.coop else -1))
    e("v_lshlrev_b32 v%d, 2, v%d" % (V_X0, V_LANE))
    e("v_lshl_add_u32 v%d, s%d, 8, v%d" % (V_X0, S_T1, V_X0))
    e("s_lshl_b32 s%d, s%d, 1" % (S_T0, S_T1))
    e("v_mov_b32 v%d, s%d" % (V_X1, S_T0))
    e("v_lshl_add_u32 v%d, v%d, 12, v%d" % (V_X2, V_LANE, V_X1))
    srd_tail(e, R_DD, 2048)
    karg_wait(e, cfg)
    srd_head(e, R_DD, P_DSK)
    par_loads(e, RAW0, "par", 0)


def pf_setup(e):
    e("s_and_b32 s%d, s%d, 15" % (S_ROT, S_CG))
    e("s_lshl_b32 s%d, s%d, 2" % (S_ROT, S_ROT))
    e("s_add_u32 s%d, s%d, s%d" % (S_ROT, S_ROT, S_H))
    e("s_lshl_b32 s%d, s%d, 8" % (S_T1, S_XCD))
    e("s_lshl_b32 s%d, s%d, 14" % (S_T0, S_ROT))
    e("s_add_u32 s%d, s%d, s%d" % (S_T0, S_T0, S_T1))
    e("v_lshrrev_b32 v12, 3, v%d" % V_LANE)
    e("v_lshlrev_b32 v12, 11, v12")
    e("v_and_b32 v13, 4, v%d" % V_LANE)
    e("v_lshl_add_u32 v12, v13, 5, v12")
    e("v_add_u32 v%d, s%d, v12" % (PF16, S_T0))


def pf_setup2(e):
    e("s_lshl_b32 s%d, s%d, 15" % (S_T0, S_ROT))
    e("s_add_u32 s%d, s%d, s%d" % (S_T0, S_T0, S_T1))
    e("v_lshrrev_b32 v12, 2, v%d" % V_LANE)
    e("v_lshlrev_b32 v12, 11, v12")
    e("v_and_b32 v13, 2, v%d" % V_LANE)
    e("v_lshl_add_u32 v12, v13, 6, v12")
    e("v_add_u32 v%d, s%d, v12" % (PF32, S_T0))
    e("s_lshl_b32 s%d, s%d, 12" % (S_T0, S_CH))
    e("s_sub_u32 s%d, s%d, 0x4000" % (S_T0, S_T0))
    e("v_lshlrev_b32 v12, 6, v%d" % V_LANE)
    e("v_add_u32 v%d, s%d, v12" % (PFS, S_T0))
    e("s_movk_i32 s%d, 0x4000" % S_PC)


def pf_item(e, cfg, spec):
    a, n = spec[0], int(spec[1])
    if a == "s":
        reg, rs, so = PFS, R_KROW, ("0" if n == 0 else "s%d" % S_PC)
    else:
        rs = {"k": R_PK, "v": R_V, "q": R_Q, "u": R_D0}[a.lower()]
        reg = PF32 if a.isupper() else PF16
        so = MB[n]
    return lambda: e.vmem("buffer_load_dword v%d, v%d, %s, %s offen%s" % (V_PF, reg, srd(rs), so, cfg.pfflag), "pf")


def prog_A_M(e, cfg):
    setup_flags(e)
    kgen_addr(e)
    setup_M(e)
    ev = cfg.aev
    PS = 20
    hk = {cfg.mlead: [lambda: e("s_setprio 2")]}
    if cfg.coop:
        ktables(e, cfg, [0], RAW0, "par", hk, tail=[lambda: flag_read(e)])
        flag_check(e, ev["X"], 0)
        for k in range(3):
            e.lds("ds_read_b128 %s, v%d offset:%d" % (vr(PS + 4 * k, 4), KXE, 256 + 4 * TROW * k), "ps%d" % k)
        e("v_add_f32 v%d, v%d, v%d" % (KT0, KT0, KVD))
        e.wait_lg("ps1")
        for k in range(8):
            e("v_add_f32 v%d, v%d, v%d" % (KT0 + k, KT0 + k, PS + k))

        def t2fix():
            e.wait_lg("ps2")
            for k in (3, 0, 1, 2):
                e("v_fma_f32 v%d, v%d, v%d, v%d" % (KT2 + k, KVU, KT2 + k, PS + 8 + k))
    else:
        ktables(e, cfg, [0, 1], RAW0, "par", hk, pk=True)
        e("v_add_f32 v%d, v%d, v%d" % (KT0, KT0, KVD))

        def t2fix():
            flag_read(e)
            for k in (3, 0, 1, 2):
                e("v_mul_f32 v%d, v%d, v%d" % (KT2 + k, KVU, KT2 + k))
    kexpand(e, cfg, t2fix, 2)
    seen = 0
    if not cfg.coop:
        flag_check(e, ev["D0"], 1)
        seen = ev["D0"]
    e("s_setprio %d" % cfg.mprioA)
    conv(e, cfg, main_prog(cfg, ev, cfg.c0first), set(), seen, [int(x) for x in cfg.wb.split(",") if x])
    finish(e, cfg)


def prog_A_H(e, cfg):
    L = [loads_A(e, i) for i in range(4)]
    cnt = [0]

    def item(x):
        if x[0] == "L":
            return lambda: run(L[int(x[1])])
        if x[0] == "P":
            def f(i=int(x[1])):
                e.wait_vm("D%d" % i)
                stamp(e, cfg, 20 + i)
                process_A(e, i)
                flag_set(e, cfg.aev["D%d" % i])
            return f
        if x[0] == "E":
            def f(i=int(x[1])):
                flag_read(e)
                flag_check(e, i + 1, 1)
                stamp(e, cfg, 30 + i)
                epilogue(e, "A", i)
            return f
        if x == "K":
            return lambda: flag_set(e, cfg.aev["K1"])
        return pf_item(e, cfg, x)
    hooks = {}
    for part in cfg.ah.split(";"):
        items, at = part.split("@")
        hooks.setdefault(int(at), []).extend(item(x) for x in items.split(","))
    first = hooks.pop(0, [])
    e.cut("L_AH_body")
    if not cfg.coop:
        setup_flags(e)
    if cfg.coop:
        par_loads(e, RAW1, "par1", 1)
    for r in (R_PK, R_V):
        srd_tail(e, r, 0x400000)
    srd_head(e, R_PK, P_K)
    srd_head(e, R_V, P_V)
    pf_setup(e)
    e("s_mov_b32 s%d, 0x05040100" % S_SELLO)
    e("s_mov_b32 s%d, 0x07060302" % S_SELHI)
    for r in (R_D0, R_Q, R_KROW):
        srd_tail(e, r, 0x400000)
    srd_tail(e, R_OUT, 0x800000)
    srd_head(e, R_D0, P_U)
    srd_head(e, R_Q, P_Q)
    srd_head(e, R_KROW, P_SSK)
    srd_head(e, R_OUT, P_OUT)
    pf_setup2(e)
    setup_H_col(e)
    run(first)
    if cfg.coop:
        setup_flags(e)
    setup_H(e, "A")
    kgen_addr(e)
    e("s_setprio 1")
    last = hooks.pop(999)
    if cfg.coop:
        ktables(e, cfg, [1], RAW0, "par", hooks)
        e.lds("ds_write_b128 v%d, %s offset:256" % (KXE, vr(KT0, 4)))
        e.lds("ds_write_b128 v%d, %s offset:%d" % (KXE, vr(KT1, 4), 256 + 4 * TROW))
        e("s_nop 5")
        for k in range(4):
            e("v_mul_f32 v%d, v%d, v%d" % (KT2 + k, KVU, KT2 + k))
        e.lds("ds_write_b128 v%d, %s offset:%d" % (KXE, vr(KT2, 4), 256 + 8 * TROW))
        flag_set(e, cfg.aev["X"])
        run(hooks.pop(100, []))
        ktables(e, cfg, [0, 1], RAW1, "par1", hooks, row0=100)
    else:
        ktables(e, cfg, [0, 1], RAW0, "par", hooks, pk=True)
    e("v_add_f32 v%d, v%d, v%d" % (KT0, KT0, KVD))

    def t2fix():
        for k in (3, 0, 1, 2):
            e("v_mul_f32 v%d, v%d, v%d" % (KT2 + k, KVU, KT2 + k))
    kexpand(e, cfg, t2fix, 2)
    run(last)
    finish(e, cfg)


def generate(cfg):
    e = Em()
    e("s_cmp_ge_u32 s2, 256")
    e("s_cbranch_scc1 L_exit")
    e("s_load_dwordx16 s[16:31], s[0:1], 0")
    e("s_load_dwordx16 s[32:47], s[0:1], 64")
    if cfg.stamps:
        e("s_memrealtime s[96:97]")
        e("s_memtime s[98:99]")
    if cfg.codepf:
        e("s_getpc_b64 s[%d:%d]" % (S_PC, S_PC + 1))
        e("s_lshr_b32 s%d, s2, 3" % S_T0)
        e("v_and_b32 v%d, 0x1e0, v0" % V_X1)
        e("v_add_lshl_u32 v%d, v%d, s%d, 7" % (V_X1, V_X1, S_T0))
        e("v_min_u32 v%d, L_exit-%s_kernel-64, v%d" % (V_X1, NAME, V_X1))
        e.vmem("global_load_dword v%d, v%d, s[%d:%d]" % (V_PF, V_X1, S_PC, S_PC + 1), "pf")
    e("v_lshrrev_b32 v%d, 6, v0" % V_X0)
    e("v_and_b32 v0, 63, v0")
    e("v_readfirstlane_b32 s%d, v%d" % (S_W, V_X0))
    e("s_and_b32 s%d, s2, 7" % S_XCD)
    e("s_lshl_b32 s%d, s%d, 4" % (S_T0, S_XCD))
    e("s_bfe_u32 s%d, s2, 0x40003" % S_T1)
    e("s_add_u32 s%d, s%d, s%d" % (S_CG, S_T0, S_T1))
    e("s_lshl_b32 s%d, s%d, 3" % (S_CH, S_CG))
    e("s_add_u32 s%d, s%d, s%d" % (S_CH, S_CH, S_W))
    e("s_and_b32 s%d, s%d, 3" % (S_H, S_W))
    e("s_cmp_ge_u32 s2, 128")
    e("s_cbranch_scc1 L_B")
    head = e
    start, bodies = list(e.lines), []

    def place(f):
        k = f.lines.index("@CUT")
        start.extend(f.lines[:k])
        bodies.append(f.lines[k + 1:])
    a = head.fork()
    prog_A_common(a, cfg)
    a("s_cmp_lt_u32 s%d, 4" % S_W)
    a("s_cbranch_scc1 L_AM_body")
    start.extend(a.lines)
    f = a.fork(); prog_A_H(f, cfg); place(f)
    f = a.fork(); f.label("L_AM_body"); prog_A_M(f, cfg); bodies.append(f.lines)
    f = head.fork(); f.label("L_B")
    f("s_cmp_ge_u32 s%d, 4" % S_W)
    f("s_cbranch_scc1 L_BH")
    prog_B_M(f, cfg); place(f)
    f = head.fork(); f.label("L_BH"); prog_B_H(f, cfg); place(f)
    out = start
    out.append("L_start_end:")
    for k in (3, 0, 1, 2):
        out += bodies[k]
    out.append("L_exit:")
    out.append("    s_endpgm")
    return out


def main():
    ap = argparse.ArgumentParser()
    ap.add_argument("-o", default="cdna_kernels/%s.s" % NAME)
    ap.add_argument("--stamps", action="store_true")
    ap.add_argument("--maxlg", type=int, default=60)
    ap.add_argument("--glead", type=int, default=14)
    ap.add_argument("--lat", type=int, default=8)
    ap.add_argument("--split", default="2220")
    ap.add_argument("--codepf", type=int, default=1)
    ap.add_argument("--ah", default="s0,s1,u0,k1,v1@0;L0@4;k2,v2,q0,u1@20;P0@40;k3,v3@50;K,L1,q1,U2,P1,Q2,L2,L3,E0,P2,P3,E1,E2,E3@999")
    ap.add_argument("--c0first", type=int, default=1)
    ap.add_argument("--bpf", type=int, default=2)
    ap.add_argument("--coop", type=int, default=0)
    ap.add_argument("--wb", default="")
    ap.add_argument("--wbmask", type=int, default=127)
    ap.add_argument("--stflag", default="")
    ap.add_argument("--mk1", type=int, default=1)
    ap.add_argument("--mprioA", type=int, default=0)
    ap.add_argument("--mprioB", type=int, default=0)
    ap.add_argument("--pfflag", default="")
    ap.add_argument("--kstamps", type=int, default=0)
    ap.add_argument("--kmf", type=int, default=6)
    ap.add_argument("--bh", default="P0:6,L1,L2:8,W1,P1,L2,q0,L3:4,E0,W2,P2,L3,q1,q2,E1,W3,P3,q3,E2,E3")
    ap.add_argument("--mlead", type=int, default=30)
    cfg = ap.parse_args()
    STFLAG[0] = cfg.stflag
    evs = []
    for part in sorted(cfg.ah.split(";"), key=lambda p: int(p.split("@")[1])):
        if int(part.split("@")[1]) >= 100 and "X" not in evs:
            evs.append("X")
        for x in part.split("@")[0].split(","):
            if x[0] == "P":
                evs.append("D" + x[1])
            elif x == "K":
                evs.append("K1")
    cfg.aev = {k: i + 1 for i, k in enumerate(evs)}
    evs = [("K1" if x == "K" else "D" + x[1]) for x in cfg.bh.split(",") if x[0] in "PK"]
    cfg.bev = {k: i + 1 for i, k in enumerate(evs)}
    if cfg.mk1:
        assert "K1" not in cfg.bev
        cfg.bev["K1"] = 0
    ref = open("cdna_kernels/%s.s.ref" % NAME).read().splitlines()
    hdr = [l for l in ref if l.startswith(";") and "@launch" not in l]
    txt = hdr + ["; @launch grid=(256,1,1) block=(512,1,1) lds=%d" % LDS_TOTAL,
                 '.amdgcn_target "amdgcn-amd-amdhsa--gfx950"', ".text",
                 ".globl %s_kernel" % NAME, ".p2align 8", ".type %s_kernel,@function" % NAME,
                 "%s_kernel:" % NAME]
    txt += generate(cfg)
    txt += ['.section .rodata,"a"', ".p2align 6", ".amdhsa_kernel %s_kernel" % NAME,
            "  .amdhsa_next_free_vgpr 256", "  .amdhsa_next_free_sgpr 102", "  .amdhsa_accum_offset 256",
            "  .amdhsa_group_segment_fixed_size 0", "  .amdhsa_kernarg_size 144", "  .amdhsa_user_sgpr_count 2",
            "  .amdhsa_user_sgpr_kernarg_segment_ptr 1", "  .amdhsa_system_sgpr_workgroup_id_x 1",
            ".end_amdhsa_kernel"]
    open(cfg.o, "w").write("\n".join(txt) + "\n")


if __name__ == "__main__":
    main()
```

```python
import sys, argparse

NAME = "concat_heads__ssm_conv_s4__ssm_conv_h3__prompt"

KS  = 9120
KC1 = 0
KC0 = 4576
UC1 = 8 * KS
UD  = 4224
UC0 = UC1 + UD
CS  = 8400
YST = UC1 + 8 * CS
YCS = 1088
YBUF = 8 * YCS
FLG = YST + 2 * YBUF
LDS_TOTAL = FLG + 32
TROW = 544

S_H, S_ROT, S_XCD, S_PC = 3, 4, 5, 6
P_U, P_ARE, P_AIM, P_BRE, P_BIM, P_CRE, P_CIM, P_LDT = 16, 18, 20, 22, 24, 26, 28, 30
P_DSK, P_Q, P_K, P_V, P_SHK, P_SSK, P_SSD, P_OUT = 32, 34, 36, 38, 40, 42, 44, 46
R_D0, R_V, R_Q, R_OUT, R_KROW, R_DD = 48, 52, 56, 60, 64, 68
R_PK = 92
S_YM = 72
S_C8, S_SC, S_WS, S_TAG, S_CNT = 8, 10, 12, 14, 15
S_ROW = [None, 72, 73, 74]
S_1M, S_2M, S_3M, S_4M, S_6M = 75, 76, 77, 78, 79
S_W, S_CG, S_CH, S_T0, S_T1, S_SELLO, S_SELHI, S_MASK, S_LB = 83, 84, 85, 86, 87, 88, 89, 90, 91
STAMP_REGS = [80, 100] + list(range(16, 48, 2))
MB = {0: "0", 1: "s%d" % S_1M, 2: "s%d" % S_2M, 3: "s%d" % S_3M, 4: "s%d" % S_4M, 6: "s%d" % S_6M}

V_LANE = 0
V_X0, V_X1, V_X2 = 1, 2, 3
V_PF = 4
V_FA, V_FW = 5, 6
V_A, V_B, V_YW, V_YW2 = 7, 8, 9, 10
V_FL = 12
V_YT = 16
V_RING = 20
NRING = 11
V_ACC = 64
V_AC = 128
NCACHE = 2
V_U1, V_U0A, V_U0B, V_YR, V_YR2 = 7, 8, 9, 10, 11
V_COL = 16
V_HALO = 20
V_QO, V_OO = 24, 26
V_DA = 28
V_W = 28
V_DB = 36
V_Q = 112
V_TB = 144
PF16, PF32, PFS = 20, 21, 22


class Em:
    def __init__(self):
        self.lines = []
        self.vm = []
        self.lg = []
        self.stamps = []
        self.extras = []
        self.xstep = 6
        self._cnt = 0

    def fork(self):
        f = Em()
        f.vm = list(self.vm)
        f.lg = list(self.lg)
        f.stamps = list(self.stamps)
        return f

    def __call__(self, s):
        self.lines.append("    " + s)
        if self.extras and s.startswith("v_") and not s.startswith("v_mfma"):
            self._cnt += 1
            if self._cnt >= self.xstep:
                self._cnt = 0
                x = self.extras.pop(0)
                ex, self.extras = self.extras, []
                x()
                self.extras = ex

    def flush_extras(self):
        ex, self.extras = self.extras, []
        for x in ex:
            x()

    def cut(self, lab):
        self("s_branch %s" % lab)
        self.lines.append("@CUT")
        self.label(lab)

    def label(self, s):
        self.lines.append(s + ":")

    def vmem(self, s, tag):
        self(s)
        self.vm.append(tag)

    def lds(self, s, tag=None):
        self(s)
        self.lg.append(tag)

    def _need(self, q, tags):
        idx = -1
        for i, t in enumerate(q):
            if t in tags:
                idx = i
        return idx

    def wait_vm(self, *tags):
        idx = self._need(self.vm, tags)
        if idx < 0:
            return
        n = len(self.vm) - 1 - idx
        assert n <= 63
        self("s_waitcnt vmcnt(%d)" % n)
        self.vm = self.vm[idx + 1:]

    def wait_lg(self, *tags):
        idx = self._need(self.lg, tags)
        if idx < 0:
            return False
        n = len(self.lg) - 1 - idx
        n = min(n, 15)
        self("s_waitcnt lgkmcnt(%d)" % n)
        self.lg = self.lg[len(self.lg) - n:] if n else []
        return True

    def wait_lg_all(self):
        if self.lg:
            self("s_waitcnt lgkmcnt(0)")
        self.lg = []

    def barrier(self):
        self.wait_lg_all()
        self("s_barrier")


_lab = [0]
YNEED = []
STFLAG = [""]


def newlab(p):
    _lab[0] += 1
    return "%s%d" % (p, _lab[0])


def vr(b, n):
    return "v[%d:%d]" % (b, b + n - 1)


def srd(b):
    return "s[%d:%d]" % (b, b + 3)


def stamp(e, cfg, idx):
    if not cfg.stamps or len(e.stamps) >= len(STAMP_REGS) or (cfg.lite and idx < 40):
        return
    r = STAMP_REGS[len(e.stamps)]
    e.stamps.append((idx, r))
    e("s_mem%stime s[%d:%d]" % ("real" if cfg.rt else "", r, r + 1))


def finish(e, cfg):
    if cfg.stamps:
        stamp(e, cfg, 40)
        e("s_waitcnt vmcnt(0)")
        stamp(e, cfg, 41)
        T = V_FL
        e("s_memrealtime s[6:7]")
        e("s_load_dwordx2 s[0:1], s[0:1], 136")
        e("v_mov_b32 v%d, 0" % T)
        e("s_waitcnt lgkmcnt(0)")
        e("v_writelane_b32 v%d, s6, 63" % T)
        e("v_writelane_b32 v%d, s96, 62" % T)
        e("v_writelane_b32 v%d, s98, 0" % T)
        for idx, r in e.stamps:
            e("v_writelane_b32 v%d, s%d, %d" % (T, r, idx))
        e("s_lshl_b32 s%d, s2, 3" % S_T0)
        e("s_add_u32 s%d, s%d, s%d" % (S_T0, S_T0, S_W))
        e("s_lshl_b32 s%d, s%d, 8" % (S_T0, S_T0))
        e("s_add_u32 s%d, s%d, 0x400000" % (S_T0, S_T0))
        e("v_lshlrev_b32 v%d, 2, v%d" % (V_X0, V_LANE))
        e("v_add_u32 v%d, s%d, v%d" % (V_X0, S_T0, V_X0))
        e("global_store_dword v%d, v%d, s[0:1]" % (V_X0, T))
    e("s_endpgm")


def srd_tail(e, r, nbytes):
    e("s_mov_b32 s%d, 0x%x" % (r + 2, nbytes))
    e("s_mov_b32 s%d, 0x20000" % (r + 3))


def srd_head(e, r, p):
    e("s_mov_b64 s[%d:%d], s[%d:%d]" % (r, r + 1, p, p + 1))


def unpack(e, dst, src, z):
    if z == 0:
        e("v_lshlrev_b32 v%d, 16, v%d" % (dst, src))
    else:
        e("v_and_b32 v%d, s%d, v%d" % (dst, S_MASK, src))


def flag_set(e, val):
    e("v_mov_b32 v%d, %d" % (V_X2, val))
    e.lds("ds_write_b32 v%d, v%d" % (V_FW, V_X2))


def flag_read(e):
    e.lds("ds_read_b128 %s, v%d" % (vr(V_FL, 4), V_FA), "flag")


def flag_eval(e, val):
    e("v_min3_u32 v%d, v%d, v%d, v%d" % (V_FL, V_FL, V_FL + 1, V_FL + 2))
    e("v_min_u32 v%d, v%d, v%d" % (V_FL, V_FL, V_FL + 3))
    e("s_nop 0")
    e("v_readfirstlane_b32 s%d, v%d" % (S_T0, V_FL))
    e("s_cmp_ge_u32 s%d, %d" % (S_T0, val))


def flag_check(e, val, sleep):
    ex, e.extras = e.extras, []
    ok, spin = newlab("L_ok"), newlab("L_spin")
    e.wait_lg("flag")
    flag_eval(e, val)
    e("s_cbranch_scc1 %s" % ok)
    e.label(spin)
    if sleep:
        e("s_sleep %d" % sleep)
    e("ds_read_b128 %s, v%d" % (vr(V_FL, 4), V_FA))
    e("s_waitcnt lgkmcnt(0)")
    flag_eval(e, val)
    e("s_cbranch_scc0 %s" % spin)
    e.label(ok)
    e.extras = ex


def col_row(e, dst, voff, rs, row, tag):
    so = S_ROW[row >> 1]
    so = "0" if so is None else "s%d" % so
    off = " offset:2048" if row & 1 else ""
    return lambda: e.vmem("buffer_load_dword v%d, v%d, %s, %s offen%s" % (dst, voff, srd(rs), so, off), tag)


def loads_B(e, i):
    tag = "D%d" % i
    b = V_DB + 19 * i
    l = [col_row(e, b + 3 + r, V_COL + i, R_D0, r, tag + "k") for r in range(8)]
    l += [col_row(e, b + r, V_HALO + i, R_D0, r, tag + "k") for r in range(3)]
    l += [col_row(e, b + 11 + r, V_COL + i, R_V, r, tag) for r in range(8)]
    return l


UAT = [1]
S_UM = 82


def loads_A(e, i):
    if UAT[0]:
        return [(lambda r=r: e.vmem("buffer_load_dwordx4 %s, v%d, %s, %s offen%s" % (vr(V_DA + 8 * i + 4 * r, 4), V_COL, srd(R_D0), MB[i], " offset:2048" if r else ""), "D%d" % i)) for r in range(2)]
    return [col_row(e, V_DA + 8 * i + r, V_COL + i, R_D0, r, "D%d" % i) for r in range(8)]


def loads_q(e, i):
    return [(lambda z=z: e.vmem("buffer_load_dwordx4 %s, v%d, %s, %s offen" % (vr(V_Q + 8 * i + 4 * z, 4), V_QO + z, srd(R_Q), MB[i]), "q%d" % i)) for z in range(2)]


def write_u(e, out, z, i, defer=False):
    adj = (3 - i) * 1024
    va = V_U0B if z else V_U0A
    if adj:
        e("v_add_u32 v%d, %d, v%d" % (V_X0 + z, adj, va))
        va = V_X0 + z
    ops = [lambda: e.lds("ds_write_b128 v%d, %s offset:%d" % (V_U1, vr(out, 4), adj + z * CS)),
           lambda: e.lds("ds_write2_b32 v%d, v%d, v%d offset0:0 offset1:1" % (va, out, out + 1)),
           lambda: e.lds("ds_write2_b32 v%d, v%d, v%d offset0:2 offset1:3" % (va, out + 2, out + 3))]
    if defer:
        e.extras, e.xstep, e._cnt = ops, 16, 12
    else:
        run(ops)


def halo_dpp(e, DK):
    for k in range(3):
        e("v_mov_b32_dpp v%d, v%d row_shr:4 row_mask:0xf bank_mask:0xf" % (DK + k, DK + 8 + k))


def process_B(e, i):
    DK = V_DB + 19 * i
    DV = DK + 11
    halo_dpp(e, DK)
    KU = V_TB
    R = V_TB + 12
    OUT = [V_TB + 20, V_TB + 24]
    for z in range(2):
        for k in range(11):
            unpack(e, KU + k, DK + k, z)
        for t in range(8):
            e("v_mul_f32 v%d, v%d, v%d" % (R + t, KU + t, V_W + 6 + z))
        for tap in (2, 1, 0):
            for t in range(8):
                e("v_fmac_f32 v%d, v%d, v%d" % (R + t, KU + t + 3 - tap, V_W + 2 * tap + z))
        for t in range(8):
            unpack(e, KU + t, DV + t, z)
        for t in range(8):
            e("v_mul_f32 v%d, v%d, v%d" % (R + t, R + t, KU + t))
        for d in range(4):
            e("v_cvt_pk_bf16_f32 v%d, v%d, v%d" % (OUT[z] + d, R + 7 - 2 * d, R + 6 - 2 * d))
        e.flush_extras()
        write_u(e, OUT[z], z, i, defer=(z == 0))


def process_B_pk(e, i, mid=None):
    DK = V_DB + 19 * i
    DV = DK + 11
    KU = V_TB + 28
    R = V_TB + 52
    OUT = [V_TB + 20, V_TB + 24]
    halo_dpp(e, DK)
    for k in range(11):
        for z in range(2):
            unpack(e, KU + 2 * k + z, DK + k, z)
    for t in range(8):
        e("v_pk_mul_f32 %s, %s, %s" % (vr(R + 2 * t, 2), vr(KU + 2 * t, 2), vr(V_W + 6, 2)))
    for tap in (2, 1, 0):
        for t in range(8):
            e("v_pk_fma_f32 %s, %s, %s, %s" % (vr(R + 2 * t, 2), vr(KU + 2 * (t + 3 - tap), 2), vr(V_W + 2 * tap, 2), vr(R + 2 * t, 2)))
    if mid:
        mid()
    for t in range(8):
        for z in range(2):
            unpack(e, KU + 2 * t + z, DV + t, z)
    for t in range(8):
        e("v_pk_mul_f32 %s, %s, %s" % (vr(R + 2 * t, 2), vr(R + 2 * t, 2), vr(KU + 2 * t, 2)))
    for z in range(2):
        for d in range(4):
            e("v_cvt_pk_bf16_f32 v%d, v%d, v%d" % (OUT[z] + d, R + 2 * (7 - 2 * d) + z, R + 2 * (6 - 2 * d) + z))
        write_u(e, OUT[z], z, i)


def process_A(e, i):
    base = V_DA + 8 * i
    if UAT[0]:
        e("s_add_u32 m0, s%d, %d" % (S_UM, 1024 * (3 - i)))
        for ch in range(8):
            e("v_perm_b32 v%d, v%d, v%d, s%d" % (60 + ch, base + (ch >> 1), base + 4 + (ch >> 1), S_SELHI if ch & 1 else S_SELLO))
            if ch:
                e.lds("ds_write_addtid_b32 v%d offset:%d" % (59 + ch, (ch - 1) * CS + UD + 8 * (((ch - 1) >> 1) & 1) - 4))
            e.lds("ds_write_addtid_b32 v%d offset:%d" % (60 + ch, ch * CS))
        e.lds("ds_write_addtid_b32 v67 offset:%d" % (7 * CS + UD + 8 - 4))
        e("s_mov_b32 m0, s%d" % S_LB)
        return
    OUT = [60, 64]
    for z in range(2):
        sel = S_SELHI if z else S_SELLO
        for d in range(4):
            e("v_perm_b32 v%d, v%d, v%d, s%d" % (OUT[z] + d, base + 6 - 2 * d, base + 7 - 2 * d, sel))
        write_u(e, OUT[z], z, i)


V_XC, V_XU = 23, 24


def setup_wide(e):
    e("v_lshl_add_u32 v%d, s%d, 6, v%d" % (V_X0, S_H, V_LANE))
    e("v_lshlrev_b32 v%d, 13, v%d" % (V_XC, V_X0))
    e("v_lshl_add_u32 v%d, s%d, 4, v%d" % (V_XC, S_CG, V_XC))
    e("v_lshlrev_b32 v%d, 3, v%d" % (V_X0, V_X0))
    e("v_sub_u32 v%d, %d, v%d" % (V_XU, UC1 + 4088 - 2048, V_X0))
    e("s_add_u32 s82, %s, 4096" % MB[2])


def loads_wide(e, half):
    for r in range(4):
        so = [["0", "s%d" % S_ROW[1]], [MB[2], "s82"]][half][r >> 1]
        e.vmem("buffer_load_dwordx4 %s, v%d, %s, %s offen%s" % (vr(V_DA + 16 * half + 4 * r, 4), V_XC, srd(R_D0), so, " offset:2048" if r & 1 else ""), "X%d" % half)


def process_wide(e, half):
    b = V_DA + 16 * half
    adj = 2048 * (1 - half)
    for ch in range(8):
        o = 60 + 2 * (ch & 3)
        sel = S_SELHI if ch & 1 else S_SELLO
        d = ch >> 1
        e("v_perm_b32 v%d, v%d, v%d, s%d" % (o, b + 8 + d, b + 12 + d, sel))
        e("v_perm_b32 v%d, v%d, v%d, s%d" % (o + 1, b + d, b + 4 + d, sel))
        e("v_add_u32 v%d, %d, v%d" % (V_X0 + (ch & 1), adj + ch * CS + UD + 8 * (d & 1) - 4, V_XU))
        e.lds("ds_write_b64 v%d, %s offset:%d" % (V_XU, vr(o, 2), adj + ch * CS))
        e.lds("ds_write2_b32 v%d, v%d, v%d offset0:0 offset1:1" % (V_X0 + (ch & 1), o, o + 1))


def epilogue(e, typ, i, zs=(0, 1)):
    TB = V_TB if typ == "B" else 60
    Y = [TB, TB + 4]
    T = TB + 8
    O = [TB + 24 + 8 * (i & 1), TB + 28 + 8 * (i & 1)]
    for z in zs:
        dst = Y[z] if typ == "B" else O[z]
        if i < 2:
            va, off, cs = V_YR, i * YBUF + 512 * z, YCS
        else:
            va, off, cs = V_YR2, (i - 2) * UD + 512 * z, CS
        e.lds("ds_read_b64_tr_b16 %s, v%d offset:%d" % (vr(dst, 2), va, off), "y%d" % z)
        e.lds("ds_read_b64_tr_b16 %s, v%d offset:%d" % (vr(dst + 2, 2), va, off + 4 * cs), "y%d" % z)
    for z in zs:
        if typ == "B":
            e.wait_vm("q%d" % i)
            q = V_Q + 8 * i + 4 * z
            for d in range(4):
                for x in range(2):
                    unpack(e, T + 2 * d + x, q + d, x)
            e.wait_lg("y%d" % z)
            for d in range(4):
                for x in range(2):
                    unpack(e, T + 8 + 2 * d + x, Y[z] + d, x)
            for k in range(8):
                e("v_mul_f32 v%d, v%d, v%d" % (T + k, T + k, T + 8 + k))
            for d in range(4):
                e("v_cvt_pk_bf16_f32 v%d, v%d, v%d" % (O[z] + d, T + 2 * d, T + 2 * d + 1))
        else:
            e.wait_lg("y%d" % z)
        e.vmem("buffer_store_dwordx4 %s, v%d, %s, %s offen%s" % (vr(O[z], 4), V_OO + z, srd(R_OUT), MB[2 * i], STFLAG[0]), "st")


def conv(e, cfg, prog, preloaded, seen0=0, wb=(), prio=""):
    prio = dict((int(x.split(":")[0]), int(x.split(":")[1])) for x in prio.split(",") if x)
    YNEED.append({})
    mf = []
    gates = {}
    yev = []
    marks = {}
    for k, it in enumerate(prog):
        if it[0] == "pass":
            _, c, pairs, gate = it
            marks[len(mf)] = k
            pairs = sorted(pairs, key=lambda pr: (pr[0] - pr[1], pr[1]))
            for s in range(8):
                for (p, r) in pairs:
                    q = p - r
                    a = ("C", c, q, s) if q < NCACHE else ("A", c, q, s, k)
                    b = ("B", c, r, s, k)
                    for f in (a, b):
                        gates.setdefault(f, gate)
                    mf.append((c, p, a, b))
        else:
            _, c, tiles, fv = it
            last = max(n for n, m in enumerate(mf) if m[0] == c and m[1] in tiles)
            yev.append([last, c, tiles, fv])
    reg, last_use, first_use, order = {}, {}, {}, []
    for n, (c, p, a, b) in enumerate(mf):
        for f in (b, a):
            last_use[f] = n
            if f not in first_use:
                first_use[f] = n
                if f[0] == "C":
                    reg[f] = V_AC + 64 * f[1] + 4 * (f[2] * 8 + f[3])
                    if f in preloaded:
                        continue
                order.append((f, 0))
                if f[0] == "B":
                    order.append((f, 1))
    BIG = 10 ** 9
    pool = [[V_RING + 4 * i, -1, BIG] for i in range(NRING)]
    if cfg.pool:
        firstw = {}
        for n, m in enumerate(mf):
            firstw.setdefault((m[0], m[1]), n)
        for (c, p), n in firstw.items():
            if n > 0:
                pool.append([V_ACC + 32 * c + 4 * p, -1, n - 4])
        for f in first_use:
            if f[0] == "C" and f not in preloaded and first_use[f] > 40:
                pool.append([reg[f], -1, first_use[f] - 24])
    st = {"nxt": 0, "seen": seen0, "flagpend": None}
    when = []
    issued_at = {}

    def lds(text, tag, n):
        e.lds(text, tag)
        when.append(n)

    def sync_when():
        del when[:max(0, len(when) - len(e.lg))]
        while len(when) < len(e.lg):
            when.insert(0, -100)

    def try_issue(done, force=False):
        if st["nxt"] >= len(order):
            return 0
        f, h = order[st["nxt"]]
        if gates[f] > st["seen"]:
            return 0
        if not force and len(e.lg) + 1 > cfg.maxlg:
            return 0
        if first_use[f] - done > cfg.maxahead:
            return 0
        if f[0] == "C":
            if any(x[0] == reg[f] and x[1] >= done for x in pool):
                assert not force
                return 0
            for x in pool:
                if x[0] == reg[f] and x[2] < BIG:
                    x[2] = -1
        elif h == 0:
            cand = [x for x in pool if x[1] < done and last_use[f] < x[2]]
            if not cand:
                assert not force, "ring too small"
                return 0
            x = min(cand, key=lambda x: (x[2], x[1]))
            x[1] = last_use[f]
            reg[f] = x[0]
        c = f[1]
        if f[0] == "B":
            off = 3640 - 512 * f[2] + 64 * f[3] + 4 * CS * c + 8 * h
            lds("ds_read_b64 %s, v%d offset:%d" % (vr(reg[f] + 2 * h, 2), V_B, off), f, done)
        else:
            lds("ds_read_b128 %s, v%d offset:%d" % (vr(reg[f], 4), V_A, 64 * (8 * f[2] + f[3]) + 4 * KS * c), f, done)
        st["nxt"] += 1
        return 1

    def needs_wait(n):
        return e._need(e.lg, (mf[n][2], mf[n][3])) >= 0

    def do_wait(n):
        idx = e._need(e.lg, (mf[n][2], mf[n][3]))
        if idx < 0:
            return
        sync_when()
        while idx + 1 < len(e.lg) and when[idx + 1] <= n - cfg.lat:
            idx += 1
        k = min(15, len(e.lg) - 1 - idx)
        e("s_waitcnt lgkmcnt(%d)" % k)
        e.lg = e.lg[len(e.lg) - k:] if k else []
        sync_when()

    gvals = sorted(set(gates.values()) - {0})
    gpos = {g: min(first_use[f] for f, h in order if gates[f] == g) for g in gvals}
    acc_init = set()
    misc = []

    def ystage(c, tiles, fv, at):
        if fv is not None:
            at -= 20
        for j in range(0, len(tiles), 2):
            sub = tiles[j:j + 2]
            for z, p in enumerate(sub):
                a = V_ACC + 32 * c + 4 * p
                misc.append(("v", lambda n, z=z, a=a: e("v_cvt_pk_bf16_f32 v%d, v%d, v%d" % (V_YT + 2 * z, a, a + 1)), at))
                def cv2(n, z=z, a=a):
                    e("v_cvt_pk_bf16_f32 v%d, v%d, v%d" % (V_YT + 2 * z + 1, a + 2, a + 3))
                    if cfg.pool:
                        pool.append([a, n, BIG])
                misc.append(("v", cv2, at))
            for z, p in enumerate(sub):
                i = p >> 1
                if i < 2:
                    va, off = V_YW, i * YBUF + 512 * (p & 1) + 4 * YCS * c
                else:
                    va, off = V_YW2, (i - 2) * UD + 512 * (p & 1) + 4 * CS * c
                def wr(n, z=z, va=va, off=off, i=i):
                    if i >= 2:
                        assert not any(f[0] == "B" and f[1] == c and f[2] <= 2 for f, h in order[st["nxt"]:]), "staging over live input"
                    if YAT[0]:
                        if st.get("m0") != va:
                            st["m0"] = va
                            e("s_mov_b32 m0, s%d" % (S_YM if va == V_YW else S_YM + 1))
                            e("s_nop 0")
                        lds("ds_write_addtid_b32 v%d offset:%d" % (V_YT + 2 * z, off), None, n)
                    else:
                        lds("ds_write_b64 v%d, %s offset:%d" % (va, vr(V_YT + 2 * z, 2), off), None, n)
                misc.append(("ds", wr, at))
                if YAT[0]:
                    misc.append(("ds", lambda n, z=z, off=off: lds("ds_write_addtid_b32 v%d offset:%d" % (V_YT + 2 * z + 1, off + 256), None, n), at))
        if fv is not None:
            misc.append(("v", lambda n: e("v_mov_b32 v%d, %d" % (V_X2, fv)), at))
            def fw(n):
                YNEED[-1][fv] = st["seen"]
                lds("ds_write_b32 v%d, v%d" % (V_FW, V_X2), None, n)
            misc.append(("ds", fw, at - 16))

    if seen0:
        sync_when()
        for _ in range(12):
            try_issue(0)
    for n, (c, p, a, b) in enumerate(mf):
        for g in gvals:
            if g > st["seen"]:
                if st["flagpend"] is None and n >= gpos[g] - cfg.glead - 6:
                    sync_when()
                    flag_read(e)
                    when.append(n)
                    st["flagpend"] = g
                if n >= gpos[g] - cfg.glead:
                    while misc:
                        misc.pop(0)[1](n)
                    flag_check(e, g, 0 if n == 0 else 1)
                    sync_when()
                    st["seen"] = g
                    st["flagpend"] = None
                    if n == 0:
                        for _ in range(12):
                            try_issue(n)
                break
        if n in marks and not (cfg.kstamps and marks[n] > 4):
            stamp(e, cfg, 10 + marks[n])
        if n in prio:
            e("s_setprio %d" % prio[n])
        if n in wb:
            lab = newlab("L_nowb")
            e("s_and_b32 s%d, s%d, %d" % (S_T1, S_CH, cfg.wbmask))
            e("s_cbranch_scc1 %s" % lab)
            e("buffer_wbl2 sc1")
            e.label(lab)
        while st["nxt"] < len(order) and first_use[order[st["nxt"]][0]] <= n:
            assert try_issue(n, True)
        do_wait(n)
        acc = V_ACC + 32 * c + 4 * p
        cc = vr(acc, 4) if (c, p) in acc_init else "0"
        acc_init.add((c, p))
        e("v_mfma_f32_16x16x32_bf16 %s, %s, %s, %s" % (vr(acc, 4), vr(reg[a], 4), vr(reg[b], 4), cc))
        while yev and n >= yev[0][0] + 8:
            _, yc, tiles, fv = yev.pop(0)
            ystage(yc, tiles, fv, n)
        def urgent():
            return st["nxt"] < len(order) and first_use[order[st["nxt"]][0]] <= n + 1 + cfg.lat
        nds = 0
        other = 1 if (n + 1 < len(mf) and needs_wait(n + 1)) else 0
        if misc and misc[0][0] == "ds" and not urgent():
            misc.pop(0)[1](n + 1); nds += 1
        elif try_issue(n + 1):
            nds += 1
        if nds and urgent() and try_issue(n + 1):
            nds += 1
        while misc and misc[0][0] == "v" and nds + other < 2:
            misc.pop(0)[1](n + 1); other += 1
        if misc and misc[0][2] + 24 < n:
            misc.pop(0)[1](n + 1)
    if yev:
        gap = len(mf) - 1 - max(y[0] for y in yev)
        k = 0
        while misc:
            misc.pop(0)[1](len(mf)); k += 1
        if 7 - gap - k >= 0:
            e("s_nop %d" % (7 - gap - k))
        for _, yc, tiles, fv in yev:
            ystage(yc, tiles, fv, len(mf))
    while misc:
        misc.pop(0)[1](len(mf))


def preload_cache(e, c):
    got = set()
    for s in range(8):
        for q in range(NCACHE):
            f = ("C", c, q, s)
            e.lds("ds_read_b128 %s, v%d offset:%d" % (vr(V_AC + 64 * c + 4 * (q * 8 + s), 4), V_A, 64 * (8 * q + s) + 4 * KS * c), f)
            got.add(f)
    return got


def set_pairs(i):
    r0, r1 = 2 * i, 2 * i + 1
    allp = [(p, r0) for p in range(r0, 8)] + [(p, r1) for p in range(r1, 8)]
    comp = [x for x in allp if x[0] <= r1]
    rest = [x for x in allp if x[0] > r1]
    return allp, comp, rest


RAW0, RAW1 = 60, 176
KT0, KT1, KT2 = 248, 252, 100
KXA, KXB, KXC, KXD, KZA, KSQ, KXE, KXW = 104, 105, 106, 107, 108, 109, 110, 111
KVR, KVD, KVR2, KVG, KVS, KVU = 112, 113, 114, 116, 117, 118
_free = [0, 1, 2, 3, 5, 6, 7, 9, 10]
SLOT_OF = {8 + i: _free[i] for i in range(9)}
SLOT_OF.update({3: 4, 4: 8, 6: 12})


def kgen_addr(e):
    rows = []
    for g in range(4):
        rows += [8 + 2 * g, 9 + 2 * g, 10 + 2 * g, [3, 4, 6, 8][g]]
    nib = 0
    for i, h in enumerate(rows):
        nib |= SLOT_OF[h] << (4 * i)
    e("s_mov_b32 m0, s%d" % S_LB)
    e("s_mov_b32 s%d, 0x41000000" % S_C8)
    e("s_mov_b32 s%d, 0x43000000" % (S_C8 + 1))
    e("v_and_b32 v%d, 15, v%d" % (V_X0, V_LANE))
    e("v_mul_u32_u24 v%d, %d, v%d" % (KVR, TROW, V_X0))
    e("v_lshrrev_b32 v%d, 4, v%d" % (KVG, V_LANE))
    e("v_lshl_add_u32 v%d, v%d, 4, v%d" % (KVR, KVG, KVR))
    e("v_add_u32 v%d, s%d, v%d" % (KVR, S_LB, KVR))
    e("v_lshlrev_b32 v%d, 4, v%d" % (KXA, V_X0))
    e("v_add_u32 v%d, s%d, v%d" % (KXA, S_LB, KXA))
    e("s_mov_b32 s%d, 0x%x" % (S_T0, nib & 0xffffffff))
    e("s_mov_b32 s%d, 0x%x" % (S_T1, nib >> 32))
    e("v_lshlrev_b32 v%d, 2, v%d" % (V_X0, V_X0))
    e("v_lshrrev_b64 v[%d:%d], v%d, s[%d:%d]" % (KVR2, KVR2 + 1, V_X0, S_T0, S_T1))
    e("v_and_b32 v%d, 15, v%d" % (V_X0, KVR2))
    e("v_mul_u32_u24 v%d, %d, v%d" % (KVR2, TROW, V_X0))
    e("v_lshl_add_u32 v%d, v%d, 4, v%d" % (KVR2, KVG, KVR2))
    e("v_add_u32 v%d, s%d, v%d" % (KVR2, S_LB, KVR2))
    e("v_and_b32 v%d, 31, v%d" % (V_X0, V_LANE))
    e("v_min_u32 v%d, 28, v%d" % (V_X0, V_X0))
    e("v_lshlrev_b32 v%d, 4, v%d" % (V_X0, V_X0))
    e("v_lshrrev_b32 v%d, 5, v%d" % (V_X1, V_LANE))
    e("v_mul_u32_u24 v%d, %d, v%d" % (V_X2, KC0, V_X1))
    e("v_add3_u32 v%d, v%d, v%d, s%d" % (KZA, V_X0, V_X2, S_LB))
    e("v_lshl_add_u32 v%d, v%d, 9, v%d" % (KXB, KVG, KXA))
    e("v_lshl_add_u32 v%d, v%d, 8, v%d" % (KXD, V_X1, KXA))
    e("v_and_b32 v%d, 1, v%d" % (V_X0, KVG))
    e("v_lshl_add_u32 v%d, v%d, 3, v%d" % (KXD, V_X0, KXD))
    e("v_lshl_add_u32 v%d, v%d, 8, v%d" % (KXC, KVG, KXA))
    e("v_add_u32 v%d, 512, v%d" % (KXC, KXC))
    e("v_max_u32 v%d, v%d, v%d" % (KXC, KXC, KXB))
    e("v_and_b32 v%d, 1, v%d" % (V_X2, V_LANE))
    e("v_cmp_eq_u32 vcc, 1, v%d" % V_X2)
    e("v_lshlrev_b32 v%d, 3, v%d" % (KXW, V_LANE))
    e("v_add_u32 v%d, s%d, v%d" % (KXW, S_LB, KXW))
    e("s_mul_i32 s%d, s%d, %d" % (S_T0, S_H, KS))
    e("s_sub_u32 s%d, s%d, s%d" % (S_T0, S_T0, S_LB))
    e("v_mul_u32_u24 v%d, %d, v%d" % (KXE, TROW, KVG))
    e("v_add3_u32 v%d, v%d, v%d, s%d" % (KXE, KXE, KXA, S_T0))


def ktables(e, cfg, ms, RAW, tag, hooks, row0=0, tail=(), pk=False):
    F = 68
    w1, w128, l1, TM = [80, 81], [82, 83], [84, 85], [86, 87]
    CF = 88
    TT = 92
    HA = 120
    LB, AF = 184, 216
    nk = 4 * len(ms)
    LD, DS = RAW + 6, RAW + 7
    e("v_mov_b32 v%d, 0x3c00" % TM[0])
    for k in range(len(ms)):
        e.lds("ds_write_addtid_b32 v%d offset:%d" % (TM[0], 256 * k))
    e.wait_vm(tag)
    stamp(e, cfg, 1 if row0 == 0 else 4)
    e("v_lshlrev_b32 v%d, 16, v%d" % (LD, LD))
    e("v_mul_f32 v%d, 0x3fb8aa3b, v%d" % (LD, LD))
    e("v_exp_f32 v%d, v%d" % (LD, LD))
    for p in range(2):
        for m in ms:
            unpack(e, F + 2 * p + m, RAW + p, m)
    e("v_cvt_pk_bf16_f32 v%d, v%d, v%d" % (LD, LD, LD))
    e("v_and_b32 v%d, s%d, v%d" % (KVU, S_MASK, LD))
    e("v_lshlrev_b32 v%d, 16, v%d" % (KVD, DS))
    e("v_mul_f32 v%d, 0x3fb8aa3b, v%d" % (LD, KVU))
    e("v_mul_f32 v%d, 0.15915494, v%d" % (DS, KVU))
    if pk:
        e("v_pk_mul_f32 %s, %s, %s op_sel_hi:[1,0]" % (vr(F, 2), vr(F, 2), vr(LD, 2)))
        e("v_pk_mul_f32 %s, %s, %s op_sel:[0,1] op_sel_hi:[1,1]" % (vr(F + 2, 2), vr(F + 2, 2), vr(LD, 2)))
    else:
        for m in ms:
            e("v_mul_f32 v%d, v%d, v%d" % (F + m, LD, F + m))
            e("v_mul_f32 v%d, v%d, v%d" % (F + 2 + m, DS, F + 2 + m))
    EX, FR, CO, SI = TT, TT + 2, TT + 4, TT + 6

    def direct(mult, dst, conj):
        out = []
        if mult == 1:
            sx, sf = F, F + 2
        else:
            sx, sf = EX, FR
            if pk:
                sp = {8: "s[%d:%d] op_sel_hi:[1,0]" % (S_C8, S_C8 + 1), 128: "s[%d:%d] op_sel:[0,1] op_sel_hi:[1,1]" % (S_C8, S_C8 + 1)}[mult]
                out.append("v_pk_mul_f32 %s, %s, %s" % (vr(FR, 2), vr(F + 2, 2), sp))
                out.append("v_pk_mul_f32 %s, %s, %s" % (vr(EX, 2), vr(F, 2), sp))
            else:
                lit = {8: "0x41000000", 128: "0x43000000"}[mult]
                for m in ms:
                    out.append("v_mul_f32 v%d, %s, v%d" % (FR + m, lit, F + 2 + m))
                    out.append("v_mul_f32 v%d, %s, v%d" % (EX + m, lit, F + m))
        for m in ms:
            out.append("v_fract_f32 v%d, v%d" % (FR + m, sf + m))
        for m in ms:
            out.append("v_exp_f32 v%d, v%d" % (EX + m, sx + m))
        for m in ms:
            out.append("v_cos_f32 v%d, v%d" % (CO + m, FR + m))
        for m in ms:
            out.append("v_sin_f32 v%d, v%d" % (SI + m, FR + m))
        if pk:
            out.append("v_pk_mul_f32 %s, %s, %s" % (vr(CO, 2), vr(CO, 2), vr(EX, 2)))
            out.append("v_pk_mul_f32 %s, %s, %s" % (vr(SI, 2), vr(SI, 2), vr(EX, 2)))
        else:
            for m in ms:
                out.append("v_mul_f32 v%d, v%d, v%d" % (CO + m, EX + m, CO + m))
            for m in ms:
                out.append("v_mul_f32 v%d, v%d, v%d" % (SI + m, EX + m, SI + m))
        for m in ms:
            out.append("v_cvt_pk_f16_f32 v%d, v%d, %sv%d" % (dst[m], CO + m, "-" if conj else "", SI + m))
        return out

    for x in direct(8, l1, True):
        e(x)
    side = []
    g = Em()
    for p in range(2, 6):
        for m in ms:
            unpack(g, F + 2 * p + m, RAW + p, m)
    side += [x.strip() for x in g.lines]
    CR, CI = CF, CF + 2
    m0, m1 = ms[0], ms[-1]
    side.append("v_max3_f32 v%d, 0, v%d, v%d" % (KSQ, F + m0, F + m1))
    side.append("v_mul_f32 v%d, 0x45000000, v%d" % (KSQ, KSQ))
    side.append("v_exp_f32 v%d, v%d" % (KSQ, KSQ))
    if pk:
        side.append("v_pk_mul_f32 %s, %s, %s" % (vr(CR, 2), vr(F + 8, 2), vr(F + 4, 2)))
        side.append("v_pk_mul_f32 %s, %s, %s" % (vr(CI, 2), vr(F + 8, 2), vr(F + 6, 2)))
        side.append("v_pk_fma_f32 %s, %s, %s, %s neg_lo:[1,0,0] neg_hi:[1,0,0]" % (vr(CR, 2), vr(F + 10, 2), vr(F + 6, 2), vr(CR, 2)))
        side.append("v_pk_fma_f32 %s, %s, %s, %s" % (vr(CI, 2), vr(F + 10, 2), vr(F + 4, 2), vr(CI, 2)))
    else:
        for m in ms:
            side.append("v_mul_f32 v%d, v%d, v%d" % (CR + m, F + 8 + m, F + 4 + m))
            side.append("v_mul_f32 v%d, v%d, v%d" % (CI + m, F + 8 + m, F + 6 + m))
        for m in ms:
            side.append("v_fma_f32 v%d, -v%d, v%d, v%d" % (CR + m, F + 10 + m, F + 6 + m, CR + m))
            side.append("v_fmac_f32 v%d, v%d, v%d" % (CI + m, F + 10 + m, F + 4 + m))
    side.append("v_max_f32_e64 v%d, abs(v%d), abs(v%d)" % (KVS, CR + m0, CI + m0))
    if len(ms) == 2:
        side.append("v_max3_f32 v%d, v%d, abs(v%d), abs(v%d)" % (KVS, KVS, CR + 1, CI + 1))
    side.append("v_mul_f32 v%d, v%d, v%d" % (KVS, KVS, KSQ))
    d1 = direct(1, w1, False) + direct(128, w128, False)
    red = ["row_shr:1", "row_shr:2", "row_shr:4", "row_shr:8", "row_bcast:15 row_mask:0xa", "row_bcast:31 row_mask:0xc"]
    for k, mode in enumerate(red):
        side += d1[:2]
        d1 = d1[2:]
        rm = "" if "row_mask" in mode else " row_mask:0xf"
        side.append("v_max_f32_dpp v%d, v%d, v%d %s%s bank_mask:0xf" % (KVS, KVS, KVS, mode, rm))
    side.append(d1.pop(0))
    side.append("v_readlane_b32 s%d, v%d, 63" % (S_SC, KVS))
    side += d1[:2]
    d1 = d1[2:]
    side.append("s_lshr_b32 s%d, s%d, 23" % (S_SC, S_SC))
    side.append("s_max_u32 s%d, s%d, 30" % (S_SC, S_SC))
    side.append("s_min_u32 s%d, s%d, 250" % (S_SC, S_SC))
    side.append("s_sub_u32 s%d, s%d, 13" % (S_SC + 1, S_SC))
    side.append("s_lshl_b32 s%d, s%d, 23" % (S_SC + 1, S_SC + 1))
    side.append("s_sub_u32 s%d, 267, s%d" % (S_SC, S_SC))
    side.append("s_lshl_b32 s%d, s%d, 23" % (S_SC, S_SC))
    side.append("v_mul_f32 v%d, s%d, v%d" % (KVU, S_SC + 1, KVU))
    h0 = [HA, HA + 1]
    if pk:
        for r in (CR, CI):
            side.append("v_pk_mul_f32 %s, %s, s[%d:%d] op_sel_hi:[1,0]" % (vr(r, 2), vr(r, 2), S_SC, S_SC + 1))
    else:
        for m in ms:
            for r in (CR, CI):
                side.append("v_mul_f32 v%d, s%d, v%d" % (r + m, S_SC, r + m))
    for m in ms:
        side.append("v_cvt_pk_f16_f32 v%d, v%d, v%d" % (h0[m], CR + m, CI + m))
    side += d1

    def mfmas(acc):
        return [(lambda ks=ks: e("v_mfma_f32_16x16x32_f16 %s, %s, %s, %s" % (vr(acc, 4), vr(AF + 4 * ks, 4), vr(LB + 4 * ks, 4), "0" if ks == 0 else vr(acc, 4)))) for ks in range(nk)]

    nreg = [HA + 2]

    def new():
        r = nreg[0]
        nreg[0] = r + 2 if r + 2 < RAW1 else HA + 2
        return [r, r + 1]
    val = {("L", 1): l1, (0, 0): h0}
    tiles = []
    t = [(None, None, None, ("L", 1), 1)]
    for j in range(2, 16):
        t.append((("L", j), ("L", j - 1), l1, ("L", j), j))
    tiles.append((t, LB, KVR, None))
    t = [(None, None, None, (0, 0), 0)]
    for y in range(1, 8):
        t.append(((0, y), (0, y - 1), w1, (0, y), y))
    for y in range(8):
        t.append(((1, y), (0, y), w128, (1, y), 8 + y))
    tiles.append((t, AF, KVR, KT0))
    t = []
    for h in (2, 3):
        for i, y in enumerate((0, 2, 4, 6)):
            t.append(((h, y), (h - 1, y), w128, (h, y), 4 * (h - 2) + i))
    for h in range(4, 8):
        for i, y in enumerate((0, 4)):
            t.append(((h, y), (h - 1, y), w128, (h, y), 8 + 2 * (h - 4) + i))
    tiles.append((t, AF, KVR, KT1))
    t = [((h, 0), (h - 1, 0), w128, (h, 0), SLOT_OF[h]) for h in range(8, 17)]
    tiles.append((t, AF, KVR2, KT2))
    ldsq, mq = [], []
    rowno = row0
    per = -(-len(side) // 14)
    pend_tag = None
    bud = (3 * len(ms) + 1) // 2
    for ti, (t, fdst, fva, acc) in enumerate(tiles):
        for ri, (d, sr, fac, key, slot) in enumerate(t):
            if d is not None:
                val[d] = new()
                for m in ms:
                    e("v_pk_mul_f16 v%d, v%d, v%d op_sel_hi:[0,1]" % (TM[m], val[sr][m], fac[m]))
                budget = bud
                if ldsq:
                    c, fn = ldsq.pop(0); fn(); budget -= c
                for m in ms:
                    e("v_pk_fma_f16 v%d, v%d, v%d, v%d op_sel:[1,1,0] op_sel_hi:[1,0,1] neg_lo:[0,1,0]" % (val[d][m], val[sr][m], fac[m], TM[m]))
                if ti == 0:
                    for x in side[:per]:
                        e(x)
                    side = side[per:]
                while ldsq and budget > 0:
                    c, fn = ldsq.pop(0); fn(); budget -= c
                if pend_tag and not any(c == 2 for c, _ in ldsq) and ri >= cfg.kmf:
                    e.wait_lg(pend_tag[0])
                    mq = mfmas(pend_tag[1])
                    pend_tag = None
                for _ in range(len(ms)):
                    if mq:
                        mq.pop(0)()
            if cfg.w64 and len(ms) == 2:
                ldsq.append((1.5, lambda key=key, slot=slot: e.lds("ds_write_b64 v%d, %s offset:%d" % (KXW, vr(val[key][0], 2), slot * TROW))))
            for k, m in enumerate(ms if not (cfg.w64 and len(ms) == 2) else []):
                ldsq.append((1, lambda m=m, k=k, key=key, slot=slot: e.lds("ds_write_addtid_b32 v%d offset:%d" % (val[key][m], slot * TROW + 256 * k))))
            rowno += 1
            if cfg.kstamps and rowno in (15, 31, 47, 115, 131, 147):
                stamp(e, cfg, 42 + (15, 31, 47, 115, 131, 147).index(rowno))
            for fn in hooks.get(rowno, []):
                fn()
        if pend_tag:
            while any(c == 2 for c, _ in ldsq):
                ldsq.pop(0)[1]()
            e.wait_lg(pend_tag[0])
            mq = mfmas(pend_tag[1])
            pend_tag = None
        while mq:
            if ldsq:
                ldsq.pop(0)[1]()
            mq.pop(0)()
        tg = "t%d" % (ti - 1)
        for ks in range(nk):
            ldsq.append((2, lambda ks=ks, fdst=fdst, fva=fva, tg=tg: e.lds("ds_read_b128 %s, v%d offset:%d" % (vr(fdst + 4 * ks, 4), fva, 64 * ks), tg)))
        if acc is not None and ti < 3:
            pend_tag = (tg, acc)
    run([fn for c, fn in ldsq])
    run(tail)
    for k in range(4):
        e("v_mov_b32 v%d, 0" % (68 + k))
    for k in range(8):
        e("v_mul_f32 v%d, v%d, v%d" % (KT0 + k, KVU, KT0 + k))
    e.wait_lg("t2")
    run(mfmas(KT2))
    stamp(e, cfg, 5 if row0 == 0 else 9)


def kexpand(e, cfg, t2fix, sid):
    T0, T1, T2 = KT0, KT1, KT2
    XA, XB, XC, XD = KXA, KXB, KXC, KXD
    N = 76
    C = 132
    e.lds("ds_write_b128 v%d, %s" % (KZA, vr(68, 4)))

    def nxt(lst):
        for n, a, b in lst:
            e("v_mov_b32_dpp v%d, v%d row_ror:15 row_mask:0xf bank_mask:0xf" % (n, b))
        e("s_nop 1")
        for n, a, b in lst:
            e("v_mov_b32_dpp v%d, v%d row_shl:1 row_mask:0xf bank_mask:0xf" % (n, a))

    def pk(d, lo, hi):
        e("v_cvt_pk_bf16_f32 v%d, v%d, v%d" % (d, lo, hi))

    a, b, c, d = T1, T1 + 1, T1 + 2, T1 + 3
    C4 = C
    pk(C4, T0, T0 + 1); pk(C4 + 1, T0 + 2, T0 + 3); pk(C4 + 2, T0 + 1, T0 + 2)
    e.lds("ds_write_b64 v%d, %s offset:%d" % (XD, vr(C4, 2), KC1 + 448))
    C2 = C + 4
    C3 = C + 12
    nxt([(N + 1, a, c)])
    pk(C2, a, a); pk(C2 + 4, a, a)
    e("s_mov_b32 exec_hi, 0")
    pk(C2 + 1, b, c); pk(C2 + 2, c, c)
    pk(C2 + 5, a, b); pk(C2 + 6, c, c); pk(C2 + 7, c, d)
    e("s_not_b64 exec, exec")
    pk(C2 + 1, a, b); pk(C2 + 2, b, b); pk(C2 + 3, N + 1, N + 1)
    pk(C2 + 5, a, a); pk(C2 + 6, b, b); pk(C2 + 7, b, N + 1)
    e("s_mov_b64 exec, -1")
    e.lds("ds_write_b128 v%d, %s offset:%d" % (XC, vr(C2 + 4, 4), KC0 + 448))
    e.lds("ds_write_b16 v%d, v%d offset:%d" % (XD, C4, KC0 + 450))
    e.lds("ds_write_b32 v%d, v%d offset:%d" % (XD, C4 + 2, KC0 + 452))
    e.lds("ds_write_b16_d16_hi v%d, v%d offset:%d" % (XD, C4 + 1, KC0 + 456))
    pk(C3, c, c); pk(C3 + 1, c, d); pk(C3 + 2, d, d)
    pk(C3 + 4, c, c); pk(C3 + 5, c, c); pk(C3 + 6, d, d)
    t2fix()
    nxt([(N, a, T2 + 3), (N + 2, c, T2 + 3)])
    e("s_mov_b32 exec_hi, 0")
    pk(C2 + 3, d, N)
    e("s_not_b64 exec, exec")
    pk(C3 + 3, N + 2, N + 2); pk(C3 + 7, d, N + 2)
    e.lds("ds_write_b128 v%d, %s offset:%d" % (XB, vr(C3, 4), KC1 + 448 + 256))
    e.lds("ds_write_b128 v%d, %s offset:%d" % (XB, vr(C3 + 4, 4), KC0 + 448 + 256))
    e("s_mov_b64 exec, -1")
    e.lds("ds_write_b128 v%d, %s offset:%d" % (XC, vr(C2, 4), KC1 + 448))
    C5 = C + 20
    nxt([(N + z, T2 + z, T2 + z + 1) for z in range(2)])
    for z in range(2):
        v0 = T2 + z
        n0 = N + z
        s = N + 2 + z
        e("v_cndmask_b32 v%d, v%d, v%d, vcc" % (s, v0, n0))
        c1 = C5 + 8 * z
        c0 = c1 + 4
        pk(c1, v0, v0); pk(c1 + 1, v0, v0); pk(c1 + 2, s, n0); pk(c1 + 3, n0, n0)
        e.lds("ds_write_b128 v%d, %s offset:%d" % (XB, vr(c1, 4), KC1 + 448 + 256 * (8 + z)))
    for z in range(2):
        pk(C5 + 8 * z + 2, T2 + z, N + 2 + z)
        e.lds("ds_write_b128 v%d, %s offset:%d" % (XB, vr(C5 + 8 * z, 4), KC0 + 448 + 256 * (8 + z)))
    stamp(e, cfg, sid)


def setup_flags(e):
    e("s_mov_b32 s%d, 0xffff0000" % S_MASK)
    e("s_mul_i32 s%d, s%d, %d" % (S_LB, S_W, KS))
    e("s_lshl_b32 s%d, s%d, 2" % (S_T0, S_W))
    e("s_add_u32 s%d, s%d, %d" % (S_T1, S_T0, FLG))
    e("v_mov_b32 v%d, s%d" % (V_FW, S_T1))
    e("s_and_b32 s%d, s%d, 16" % (S_T0, S_T0))
    e("s_sub_u32 s%d, %d, s%d" % (S_T0, FLG + 16, S_T0))
    e("v_mov_b32 v%d, s%d" % (V_FA, S_T0))
    e("v_mov_b32 v%d, 0" % V_X2)
    e.lds("ds_write_b32 v%d, v%d" % (V_FW, V_X2))
    e.barrier()


def karg_wait(e, cfg):
    stamp(e, cfg, 7)
    e("s_waitcnt lgkmcnt(0)")
    stamp(e, cfg, 8)


def setup_M(e):
    L = V_LANE
    e("v_and_b32 v%d, 1, v%d" % (V_X2, L))
    e("v_xor_b32 v%d, 1, v%d" % (V_X2, V_X2))
    e("v_and_b32 v%d, 48, v%d" % (V_X1, L))
    e("v_mul_u32_u24 v%d, %d, v%d" % (V_A, KC0, V_X2))
    e("v_bfe_u32 v%d, v%d, 1, 3" % (V_X0, L))
    e("v_lshl_add_u32 v%d, v%d, 6, v%d" % (V_A, V_X0, V_A))
    e("v_add3_u32 v%d, v%d, v%d, s%d" % (V_A, V_A, V_X1, S_LB))
    e("s_lshl_b32 s%d, s%d, 2" % (S_T0, S_W))
    e("s_and_b32 s%d, s%d, 8" % (S_T0, S_T0))
    e("s_add_u32 s%d, s%d, %d" % (S_T0, S_T0, UD))
    e("v_mul_u32_u24 v%d, s%d, v%d" % (V_B, S_T0, V_X2))
    e("v_lshlrev_b32 v%d, 3, v%d" % (V_X0, V_X0))
    e("v_sub_u32 v%d, v%d, v%d" % (V_B, V_B, V_X0))
    e("s_mul_i32 s%d, s%d, %d" % (S_T1, S_W, CS))
    e("s_add_u32 s%d, s%d, %d" % (S_T1, S_T1, UC1))
    e("v_add3_u32 v%d, v%d, v%d, s%d" % (V_B, V_B, V_X1, S_T1))
    e("v_and_b32 v%d, 31, v%d" % (V_X0, L))
    e("v_min_u32 v%d, 14, v%d" % (V_X0, V_X0))
    e("v_lshlrev_b32 v%d, 2, v%d" % (V_X0, V_X0))
    e("v_lshrrev_b32 v%d, 5, v%d" % (V_X1, L))
    e("s_add_u32 s%d, s%d, -4" % (S_T0, S_T0))
    e("v_mul_u32_u24 v%d, s%d, v%d" % (V_X1, S_T0, V_X1))
    e("v_add3_u32 v%d, v%d, v%d, s%d" % (V_X0, V_X0, V_X1, S_T1))
    e("v_mov_b32 v%d, 0" % V_X1)
    e.lds("ds_write_b32 v%d, v%d offset:4096" % (V_X0, V_X1))
    e.lds("ds_write_b32 v%d, v%d offset:%d" % (V_X0, V_X1, 4096 + 4 * CS))
    if YAT[0]:
        e("s_add_u32 s%d, s%d, 3072" % (S_YM + 1, S_T1))
        e("s_mul_i32 s%d, s%d, %d" % (S_T0, S_W, YCS))
        e("s_add_u32 s%d, s%d, %d" % (S_YM, S_T0, YST))
        return
    e("v_lshlrev_b32 v%d, 3, v%d" % (V_YW, L))
    e("s_add_u32 s%d, s%d, 3072" % (S_T1, S_T1))
    e("v_add_u32 v%d, s%d, v%d" % (V_YW2, S_T1, V_YW))
    e("s_mul_i32 s%d, s%d, %d" % (S_T0, S_W, YCS))
    e("s_add_u32 s%d, s%d, %d" % (S_T0, S_T0, YST))
    e("v_add_u32 v%d, s%d, v%d" % (V_YW, S_T0, V_YW))


SWZ = [1]
V_T = 15


def setup_col0(e):
    L = V_LANE
    for i in range(1, 4):
        e("s_movk_i32 s%d, %d" % (S_ROW[i], 4096 * i))
    if SWZ[0]:
        e("s_mul_i32 s%d, s%d, 0x60" % (S_T0, S_H))
        e("s_and_b32 s%d, s%d, 0x20" % (S_T1, S_T0))
        e("s_lshl_b32 s%d, s%d, 6" % (S_T0, S_H))
        e("s_and_b32 s%d, s%d, 0x80" % (S_T0, S_T0))
        e("s_or_b32 s%d, s%d, s%d" % (S_T0, S_T0, S_T1))
        e("v_and_b32 v%d, 32, v%d" % (V_X0, L))
        e("v_add3_u32 v%d, v%d, v%d, s%d" % (V_T, V_X0, L, S_T0))
    else:
        e("v_lshl_add_u32 v%d, s%d, 6, v%d" % (V_T, S_H, L))
    e("v_lshrrev_b32 v%d, 2, v%d" % (V_X0, V_T))
    e("v_lshlrev_b32 v%d, 14, v%d" % (V_COL, V_X0))
    e("v_and_b32 v%d, 3, v%d" % (V_X1, L))
    e("v_lshl_add_u32 v%d, v%d, 2, v%d" % (V_COL, V_X1, V_COL))
    e("v_lshl_add_u32 v%d, s%d, 4, v%d" % (V_COL, S_CG, V_COL))


def setup_H_col(e):
    if UAT[0]:
        for mb in (1, 2, 3, 4, 6):
            e("s_mov_b32 %s, 0x%x" % (MB[mb], mb << 20))
        e("s_lshl_b32 s%d, s%d, 18" % (S_T0, S_H))
        e("s_lshl_b32 s%d, s%d, 4" % (S_T1, S_CG))
        e("s_add_u32 s%d, s%d, s%d" % (S_T0, S_T0, S_T1))
        e("s_add_u32 s%d, s%d, %d" % (S_T0, S_T0, 126 * 2048))
        e("v_lshlrev_b32 v%d, 12, v%d" % (V_COL, V_LANE))
        e("v_sub_u32 v%d, s%d, v%d" % (V_COL, S_T0, V_COL))
        e("s_lshl_b32 s%d, s%d, 8" % (S_T0, S_H))
        e("s_sub_u32 s%d, %d, s%d" % (S_UM, UC1 + 768, S_T0))
        return
    setup_col0(e)
    for mb in (1, 2, 3, 4, 6):
        e("s_mov_b32 %s, 0x%x" % (MB[mb], mb << 20))
    for i in range(1, 4):
        e("v_add_u32 v%d, %s, v%d" % (V_COL + i, MB[i], V_COL))


YAT = [1]


def setup_H(e, typ):
    L = V_LANE
    e("v_and_b32 v%d, 3, v%d" % (V_X1, L))
    if typ == "B" or not UAT[0]:
        e("v_mul_u32_u24 v%d, %d, v%d" % (V_U1, 2 * CS + 4, V_X1))
        e("v_lshlrev_b32 v%d, 2, v%d" % (V_X2, V_T))
        e("v_sub_u32 v%d, v%d, v%d" % (V_U1, V_U1, V_X2))
        e("v_add_u32 v%d, %d, v%d" % (V_U1, UC1 + 4080 - 3072, V_U1))
        e("v_and_b32 v%d, 1, v%d" % (V_X2, L))
        e("v_lshl_add_u32 v%d, v%d, 3, v%d" % (V_U0A, V_X2, V_U1))
        e("v_add_u32 v%d, %d, v%d" % (V_U0A, UD - 4, V_U0A))
        e("v_add_u32 v%d, %d, v%d" % (V_U0B, CS, V_U0A))
    if YAT[0]:
        e("v_lshl_add_u32 v%d, s%d, 6, v%d" % (V_T, S_H, L))
        e("s_mul_i32 s%d, s%d, 0x90" % (S_T0, S_H))
        e("s_and_b32 s%d, s%d, 0xa0" % (S_T0, S_T0))
        e("v_and_b32 v%d, 32, v%d" % (V_X0, L))
        e("v_add3_u32 v%d, v%d, v%d, s%d" % (V_X0, V_X0, L, S_T0))
    else:
        if typ == "A" and UAT[0]:
            e("s_mul_i32 s%d, s%d, 0x60" % (S_T0, S_H))
            e("s_and_b32 s%d, s%d, 0x20" % (S_T1, S_T0))
            e("s_lshl_b32 s%d, s%d, 6" % (S_T0, S_H))
            e("s_and_b32 s%d, s%d, 0x80" % (S_T0, S_T0))
            e("s_or_b32 s%d, s%d, s%d" % (S_T0, S_T0, S_T1))
            e("v_and_b32 v%d, 32, v%d" % (V_X0, L))
            e("v_add3_u32 v%d, v%d, v%d, s%d" % (V_T, V_X0, L, S_T0))
        e("v_and_b32 v%d, 0xc1, v%d" % (V_X0, V_T))
        e("v_bfe_u32 v%d, v%d, 2, 4" % (V_X2, V_T))
        e("v_lshl_add_u32 v%d, v%d, 1, v%d" % (V_X0, V_X2, V_X0))
        e("v_and_b32 v%d, 2, v%d" % (V_X2, L))
        e("v_lshl_add_u32 v%d, v%d, 4, v%d" % (V_X0, V_X2, V_X0))
    e("s_lshl_b32 s%d, s%d, 4" % (S_T1, S_CG))
    if typ == "B":
        e("v_lshl_add_u32 v%d, v%d, 11, s%d" % (V_QO, V_X0, S_T1))
        e("v_add_u32 v%d, 0x80000, v%d" % (V_QO + 1, V_QO))
        e("s_add_u32 s%d, s%d, 2048" % (S_T1, S_T1))
    e("v_lshl_add_u32 v%d, v%d, 12, s%d" % (V_OO, V_X0, S_T1))
    e("v_add_u32 v%d, %s, v%d" % (V_OO + 1, MB[1], V_OO))
    e("v_and_b32 v%d, 0xf0, v%d" % (V_X2, V_T))
    e("v_lshlrev_b32 v%d, 1, v%d" % (V_X2, V_X2))
    e("v_lshl_add_u32 v%d, v%d, 3, v%d" % (V_X2, V_X1, V_X2))
    e("v_bfe_u32 v%d, v%d, 2, 2" % (V_X0, L))
    e("s_movk_i32 s%d, %d" % (S_T0, YCS))
    e("v_mad_u32_u24 v%d, v%d, s%d, v%d" % (V_YR, V_X0, S_T0, V_X2))
    e("v_add_u32 v%d, %d, v%d" % (V_YR, YST, V_YR))
    e("s_movk_i32 s%d, %d" % (S_T0, CS))
    e("v_mad_u32_u24 v%d, v%d, s%d, v%d" % (V_YR2, V_X0, S_T0, V_X2))
    e("v_add_u32 v%d, %d, v%d" % (V_YR2, UC1 + 3072, V_YR2))


def run(l):
    for x in l:
        x()


def set_prog(cfg, i, gate):
    allp, comp, rest = set_pairs(i)
    t = [2 * i, 2 * i + 1]
    if cfg.split[i] == "1" and rest:
        return [("pass", 0, comp, gate), ("y", 0, t, None), ("pass", 1, comp, gate), ("y", 1, t, i + 1),
                ("pass", 0, rest, gate), ("pass", 1, rest, gate)]
    if cfg.split[i] == "2" and rest:
        return [("pass", 0, allp, gate), ("y", 0, t, None), ("pass", 1, comp, gate), ("y", 1, t, i + 1),
                ("pass", 1, rest, gate)]
    return [("pass", 0, allp, gate), ("y", 0, t, None), ("pass", 1, allp, gate), ("y", 1, t, i + 1)]


class KPrep:
    def __init__(self, e, base, c=0, A=None):
        self.e, self.KD, self.OUT, self.PV, self.DD, self.T, self.A = e, base, base + 16, base + 32, base + 36, base + 37, base + 40
        self.c = c
        if A is not None:
            self.A = A

    def addr(self):
        e, A = self.e, self.A
        e("v_lshlrev_b32 v%d, 4, v%d" % (A, V_LANE))
        e("v_lshl_add_u32 v%d, s%d, 12, v%d" % (A + 1, S_CH, A))
        e("s_lshl_b32 s%d, s%d, 1" % (S_T0, S_CH))
        e("v_lshlrev_b32 v%d, 12, v%d" % (A + 2, V_LANE))
        e("v_add_u32 v%d, s%d, v%d" % (A + 2, S_T0, A + 2))
        srd_tail(e, R_KROW, 0x400000)
        srd_tail(e, R_DD, 2048)

    def heads(self):
        srd_head(self.e, R_KROW, P_SSK)
        srd_head(self.e, R_DD, P_SSD)

    def issue(self):
        e = self.e
        for i in range(4):
            e.vmem("buffer_load_dwordx4 %s, v%d, %s, %s offen offset:%d" % (vr(self.KD + 4 * i, 4), self.A + 1, srd(R_KROW), "s%d" % S_PC if self.c else "0", 1024 * i), "K%d" % self.c)
        e.vmem("buffer_load_ushort v%d, v%d, %s, 0 offen offset:%d" % (self.DD, self.A + 2, srd(R_DD), 8 * self.c), "K%d" % self.c)

    def zero(self, both=None):
        e, A, Z = self.e, self.A, self.OUT
        e("v_add_u32 v%d, s%d, v%d" % (A, S_LB, A))
        for i in range(4):
            e("v_mov_b32 v%d, 0" % (Z + i))
        e("v_mov_b32 v%d, 0" % self.PV)
        e("v_and_b32 v%d, 31, v%d" % (V_X0, V_LANE))
        e("v_min_u32 v%d, 27, v%d" % (V_X0, V_X0))
        e("v_lshlrev_b32 v%d, 4, v%d" % (V_X0, V_X0))
        e("v_lshrrev_b32 v%d, 5, v%d" % (V_X2, V_LANE))
        e("v_mul_u32_u24 v%d, %d, v%d" % (V_X2, KC0, V_X2))
        e("v_add3_u32 v%d, v%d, v%d, s%d" % (V_X0, V_X0, V_X2, S_LB))
        e.lds("ds_write_b128 v%d, %s" % (V_X0, vr(Z, 4)))
        if both:
            e.lds("ds_write_b128 v%d, %s offset:%d" % (V_X0, vr(Z, 4), 4 * KS))
            e("v_mov_b32 v%d, 0" % both.PV)
            e("s_movk_i32 s%d, 0x4000" % S_PC)

    def finish(self):
        e, KD, PV, DD, T, A = self.e, self.KD, self.PV, self.DD, self.T, self.A
        e.wait_vm("K%d" % self.c)
        for i in range(1, 4):
            e("v_mov_b32_dpp v%d, v%d wave_ror:1 row_mask:0xf bank_mask:0xf" % (PV + i, KD + 4 * i - 1))
        e("v_lshlrev_b32 v%d, 16, v%d" % (DD, DD))
        e("v_lshlrev_b32 v%d, 16, v%d" % (T, KD))
        for i in range(4):
            e("v_mov_b32_dpp v%d, v%d wave_shr:1 row_mask:0xf bank_mask:0xf" % (PV + i, KD + 4 * i + 3))
        e("v_and_b32 v%d, s%d, v%d" % (T + 1, S_MASK, KD))
        e("v_add_f32 v%d, v%d, v%d" % (T, T, DD))
        e("v_cvt_pk_bf16_f32 v%d, v%d, v%d" % (KD, T, T + 1))
        for i in range(4):
            k = KD + 4 * i
            o = self.OUT + 4 * i
            e.lds("ds_write_b128 v%d, %s offset:%d" % (A, vr(k, 4), KC1 + 448 + 1024 * i + 4 * KS * self.c))
            e("v_alignbit_b32 v%d, v%d, v%d, 16" % (o, k, PV + i))
            for d in range(1, 4):
                e("v_alignbit_b32 v%d, v%d, v%d, 16" % (o + d, k + d, k + d - 1))
            e.lds("ds_write_b128 v%d, %s offset:%d" % (A, vr(o, 4), KC0 + 448 + 1024 * i + 4 * KS * self.c))


def main_prog(cfg, ev, n0, merge=0):
    S = [set_pairs(i) for i in range(4)]
    g = lambda *x: max(ev[k] for k in x)
    D = lambda i: ["D%d" % k for k in range(i + 1)]
    prog = []
    if merge:
        prog += [("pass", 0, sum((S[i][0] for i in range(n0)), []), g(*D(n0 - 1))), ("y", 0, list(range(2 * n0)), None)]
    for i in range(0 if not merge else n0, n0):
        prog += [("pass", 0, S[i][0], g(*D(i))), ("y", 0, [2 * i, 2 * i + 1], None)]
    for i in range(n0):
        gi = g("K1", *D(n0 - 1))
        if cfg.split[i] == "0":
            prog += [("pass", 1, S[i][0], gi), ("y", 1, [2 * i, 2 * i + 1], i + 1)]
            continue
        prog += [("pass", 1, S[i][1], gi), ("y", 1, [2 * i, 2 * i + 1], i + 1)]
        if S[i][2]:
            prog += [("pass", 1, S[i][2], gi)]
    for i in range(n0, 4):
        prog += set_prog(cfg, i, g("K1", *D(i)))
    return prog


def dsl_prog(text, ev):
    todo = {c: set((p, r) for p in range(8) for r in range(p + 1)) for c in range(2)}
    passes = []
    for part in text.split("/"):
        c, rest = part.split(":", 1)
        c = int(c)
        pairs = []
        for blk in rest.split("+"):
            pr, rr = blk.split(":")
            pairs += [(p, r) for p in range(int(pr[0]), int(pr[-1]) + 1) for r in range(int(rr[0]), int(rr[-1]) + 1) if r <= p]
        passes.append((c, pairs))
    prog, staged, flagged, gate = [], set(), 0, 0
    for c, pairs in passes:
        for x in pairs:
            todo[c].remove(x)
        need = ["D%d" % k for k in range(max(r for p, r in pairs) // 2 + 1)] + (["K1"] if c else [])
        gate = max([gate] + [ev[k] for k in need])
        prog.append(("pass", c, pairs, gate))
        done = [p for p in range(8) if (c, p) not in staged and not any(x[0] == p for x in todo[c])]
        if done:
            if max(done) >= 4:
                assert not any(x[1] <= 2 for x in todo[c]), "staging would overwrite live input"
            staged |= set((c, p) for p in done)
            fv = flagged
            while fv < 4 and all((cc, p) in staged for cc in range(2) for p in (2 * fv, 2 * fv + 1)):
                fv += 1
            prog.append(("y", c, done, fv if fv > flagged else None))
            flagged = fv
    assert not todo[0] and not todo[1] and flagged == 4
    return prog


def prog_B_M_off(e, cfg):
    kp = KPrep(e, 16)
    par_addr(e, S_CH)
    pf_setup(e)
    karg_wait(e, cfg)
    srd_head(e, R_DD, P_DSK)
    if cfg.parfirst:
        par_loads(e, RAW0, "par", 1)
    for p in (P_K, P_V):
        e.vmem("global_load_dword v%d, v%d, s[%d:%d]" % (V_PF, PF16, p, p + 1), "pf")
    if not cfg.parfirst:
        par_loads(e, RAW0, "par", 1)
    e.cut("L_BM_body")
    setup_flags(e)
    handoff_open(e)
    kp.addr()
    kp.heads()
    kgen_addr(e)
    setup_M(e)
    ktables(e, cfg, [0, 1], RAW0, "par", {cfg.k0row: [kp.issue]}, pk=True)
    G = 120
    e("s_waitcnt lgkmcnt(0)")
    e("s_add_u32 s%d, s%d, 1" % (S_TAG, S_TAG))
    e("v_add_f32 v%d, v%d, v%d" % (KT0, KT0, KVD))
    for k in range(6):
        e("v_mov_b32 v%d, s%d" % (G + 2 * k + 1, S_TAG))
    for k in range(4):
        e("v_cvt_pk_bf16_f32 v%d, v%d, v%d" % (G + 2 * k, KT0 + 2 * k, KT0 + 2 * k + 1))
    e("v_lshlrev_b32 v%d, 4, v%d" % (V_X0, V_LANE))
    e("s_setprio 3")
    for k in range(2):
        e.vmem("global_store_dwordx4 v%d, %s, s[%d:%d] offset:%d sc1" % (V_X0, vr(G + 4 * k, 4), S_WS, S_WS + 1, 1024 * k), "st")
    for k in range(4):
        e("v_mul_f32 v%d, v%d, v%d" % (KT2 + k, KVU, KT2 + k))
    for k in range(2):
        e("v_cvt_pk_bf16_f32 v%d, v%d, v%d" % (G + 8 + 2 * k, KT2 + 2 * k, KT2 + 2 * k + 1))
    e.vmem("global_store_dwordx4 v%d, %s, s[%d:%d] offset:2048 sc1" % (V_X0, vr(G + 8, 4), S_WS, S_WS + 1), "st")
    e("s_setprio 0")
    stamp(e, cfg, 2)
    kp.zero()
    kp.finish()
    stamp(e, cfg, 3)
    conv(e, cfg, main_prog(cfg, cfg.bev, 1), set(), prio=cfg.mprioB)
    finish(e, cfg)


def prog_B_M(e, cfg):
    if cfg.off:
        return prog_B_M_off(e, cfg)
    kp = KPrep(e, 64)
    if cfg.bpf == 2:
        pf_setup(e)
        karg_wait(e, cfg)
        for p in (P_K, P_V):
            e.vmem("global_load_dword v%d, v%d, s[%d:%d]" % (V_PF, PF16, p, p + 1), "pf")
        e.cut("L_BM_body")
        kp.addr()
        kp.heads()
    else:
        kp.addr()
        karg_wait(e, cfg)
        kp.heads()
        e("s_mul_i32 s%d, s%d, %d" % (S_LB, S_W, KS))
        kp.issue()
        e.cut("L_BM_body")
    setup_flags(e)
    kp1 = KPrep(e, 20, 1, kp.A) if cfg.mk1 else None
    kp.zero(kp1)
    setup_M(e)
    if cfg.bpf == 2:
        e.wait_vm("pf")
        stamp(e, cfg, 4)
        kp.issue()
    if cfg.mk1 == 1:
        kp1.issue()
    e.wait_vm("K0")
    stamp(e, cfg, 1)
    if cfg.mk1 == 2:
        kp1.issue()
    kp.finish()
    pre = preload_cache(e, 0)
    if cfg.mk1:
        e.wait_vm("K1")
        stamp(e, cfg, 2)
        kp1.finish()
        pre |= preload_cache(e, 1)
    stamp(e, cfg, 3)
    conv(e, cfg, dsl_prog(cfg.bprog, cfg.bev) if cfg.bprog else main_prog(cfg, cfg.bev, 1), pre, prio=cfg.mprioB)
    finish(e, cfg)


def prog_B_H(e, cfg):
    L_ = V_LANE
    if cfg.bpf == 1:
        pf_setup(e)
        karg_wait(e, cfg)
        for p in (P_K, P_V):
            e.vmem("global_load_dword v%d, v%d, s[%d:%d]" % (V_PF, PF16, p, p + 1), "pf")
    setup_col0(e)
    e("v_lshlrev_b32 v%d, 4, v%d" % (V_X1, V_X1))
    e("s_lshl_b32 s%d, s%d, 6" % (S_T1, S_CG))
    e("v_add_u32 v%d, s%d, v%d" % (V_X1, S_T1, V_X1))
    srd_tail(e, R_D0, 0x400000)
    srd_tail(e, R_V, 0x400000)
    if cfg.bpf != 1:
        karg_wait(e, cfg)
    srd_head(e, R_D0, P_K)
    srd_head(e, R_V, P_V)
    WR = V_TB
    L = [loads_B(e, i) for i in range(4)]
    Qs = [loads_q(e, i) for i in range(4)]
    e.vmem("global_load_dwordx4 %s, v%d, s[%d:%d]" % (vr(WR, 4), V_X1, P_SHK, P_SHK + 1), "W")
    run(L[0][:8])
    e.cut("L_BH_body")
    setup_flags(e)
    for mb in (1, 2, 3, 4, 6):
        e("s_mov_b32 %s, 0x%x" % (MB[mb], mb << 20))
    for i in range(1, 4):
        e("v_add_u32 v%d, %s, v%d" % (V_COL + i, MB[i], V_COL))
    for i in range(4):
        e("v_subrev_u32 v%d, 6144, v%d" % (V_HALO + i, V_COL + i))
    e("v_and_b32 v%d, 0x0fffffff, v%d" % (V_HALO, V_HALO))
    e("v_and_b32 v%d, 12, v%d" % (V_X2, V_LANE))
    for i in range(4):
        e("v_lshl_add_u32 v%d, v%d, 27, v%d" % (V_HALO + i, V_X2, V_HALO + i))
    srd_tail(e, R_Q, 0x400000)
    srd_tail(e, R_OUT, 0x800000)
    srd_head(e, R_Q, P_Q)
    srd_head(e, R_OUT, P_OUT)
    setup_H(e, "B")
    kp = KPrep(e, 212)
    if not cfg.mk1:
        kp.addr()
        kp.heads()
        kp.zero()
    run(L[0][8:])
    stamp(e, cfg, 6)
    e.wait_vm("W")
    for z in range(2):
        for tap in range(4):
            unpack(e, V_W + 2 * tap + z, WR + 2 * z + (tap >> 1), tap & 1)
    pos = [19, 0, 0, 0]
    for x in cfg.bh.split(","):
        if x == "k":
            kp.issue()
            continue
        if x == "K":
            kp.finish()
            flag_set(e, cfg.bev["K1"])
            stamp(e, cfg, 2)
            continue
        i = int(x[1])
        if x[0] == "L":
            n = int(x[3:]) if len(x) > 2 else 19
            assert n >= pos[i]
            run(L[i][pos[i]:n])
            pos[i] = n
        elif x[0] == "W":
            assert pos[i] == 19
            e.wait_vm("D%d" % i)
            stamp(e, cfg, 20 + i)
            if i == 0:
                e("s_setprio 2")
        elif x[0] == "P":
            assert pos[i] == 19
            if i == 0:
                n = int(x[3:]) if len(x) > 2 else 0
                e.wait_vm("D0k")
                e("s_setprio 2")

                def mid():
                    run(L[1][pos[1]:n])
                    pos[1] = max(pos[1], n)
                    e.wait_vm("D0")
                    stamp(e, cfg, 20)
                process_B_pk(e, 0, mid)
            else:
                e.wait_vm("D%d" % i)
                process_B(e, i)
            flag_set(e, cfg.bev["D%d" % i])
            stamp(e, cfg, 10 + i)
        elif x[0] == "q":
            run(Qs[i])
        elif x[0] == "E":
            flag_read(e)
            flag_check(e, i + 1, 0 if i == 3 else 1)
            stamp(e, cfg, 30 + i)
            epilogue(e, "B", i)
    finish(e, cfg)


def par_addr(e, s_ch):
    e("v_lshlrev_b32 v%d, 2, v%d" % (V_X0, V_LANE))
    e("v_lshl_add_u32 v%d, s%d, 8, v%d" % (V_X0, s_ch, V_X0))
    e("s_lshl_b32 s%d, s%d, 1" % (S_T0, s_ch))
    e("v_mov_b32 v%d, s%d" % (V_X1, S_T0))
    e("v_lshl_add_u32 v%d, v%d, 12, v%d" % (V_X2, V_LANE, V_X1))
    srd_tail(e, R_DD, 2048)


def handoff_open(e):
    e("s_lshl_b32 s%d, s%d, 2" % (S_T0, S_CG))
    e("s_add_u32 s%d, s%d, s%d" % (S_T0, S_T0, S_H))
    if XSLOT[0]:
        e("s_xor_b32 s%d, s%d, 0" % (S_T0, S_T0))
    e("s_mul_i32 s%d, s%d, 3072" % (S_T0, S_T0))
    e("s_add_u32 s%d, s%d, s%d" % (S_WS, S_WS, S_T0))
    e("s_addc_u32 s%d, s%d, 0" % (S_WS + 1, S_WS + 1))
    e("s_load_dword s%d, s[%d:%d], 4" % (S_TAG, S_WS, S_WS + 1))


XSLOT = [0]
EXTRA = []


def par_loads(e, raw, tag, c):
    e.vmem("global_load_ushort v%d, v%d, s[%d:%d] offset:%d" % (raw + 6, V_X1, P_LDT, P_LDT + 1, 8 * c), tag)
    for i, p in enumerate((P_ARE, P_AIM, P_BRE, P_BIM, P_CRE, P_CIM)):
        e.vmem("global_load_dword v%d, v%d, s[%d:%d] offset:%d" % (raw + i, V_X0, p, p + 1, 1024 * c), tag)
    e.vmem("buffer_load_ushort v%d, v%d, %s, 0 offen offset:%d" % (raw + 7, V_X2, srd(R_DD), 8 * c), tag)


def prog_A_common(e, cfg):
    e("s_and_b32 s%d, s%d, %d" % (S_T1, S_CH, -5 if cfg.coop else -1))
    par_addr(e, S_T1)
    karg_wait(e, cfg)
    if cfg.off and not cfg.coop:
        e("s_cmp_ge_u32 s%d, 4" % S_W)
        e("s_cbranch_scc1 L_AH_body")
    srd_head(e, R_DD, P_DSK)
    par_loads(e, RAW0, "par", 0)


MAP = [0]


def pf_setup(e):
    e("s_bfe_u32 s%d, s2, 0x40003" % S_ROT)
    e("s_lshl_b32 s%d, s%d, 2" % (S_ROT, S_ROT))
    e("s_add_u32 s%d, s%d, s%d" % (S_ROT, S_ROT, S_H))
    e("s_lshl_b32 s%d, s%d, %d" % (S_T1, S_XCD, 7 if MAP[0] else 8))
    e("s_lshl_b32 s%d, s%d, 14" % (S_T0, S_ROT))
    e("s_add_u32 s%d, s%d, s%d" % (S_T0, S_T0, S_T1))
    e("v_lshrrev_b32 v12, 3, v%d" % V_LANE)
    e("v_lshlrev_b32 v12, 11, v12")
    e("v_and_b32 v13, 4, v%d" % V_LANE)
    e("v_lshl_add_u32 v12, v13, %d, v12" % (8 if MAP[0] else 5))
    e("v_add_u32 v%d, s%d, v12" % (PF16, S_T0))


def pf_setup2(e):
    e("s_lshl_b32 s%d, s%d, 15" % (S_T0, S_ROT))
    e("s_add_u32 s%d, s%d, s%d" % (S_T0, S_T0, S_T1))
    e("v_lshrrev_b32 v12, 2, v%d" % V_LANE)
    e("v_lshlrev_b32 v12, 11, v12")
    e("v_and_b32 v13, 2, v%d" % V_LANE)
    e("v_lshl_add_u32 v12, v13, %d, v12" % (9 if MAP[0] else 6))
    e("v_add_u32 v%d, s%d, v12" % (PF32, S_T0))
    e("s_lshl_b32 s%d, s%d, 12" % (S_T0, S_CH))
    e("s_sub_u32 s%d, s%d, 0x4000" % (S_T0, S_T0))
    e("v_lshlrev_b32 v12, 6, v%d" % V_LANE)
    e("v_add_u32 v%d, s%d, v12" % (PFS, S_T0))
    e("s_movk_i32 s%d, 0x4000" % S_PC)


def pf_item(e, cfg, spec):
    a, n = spec[0], int(spec[1])
    if a == "s":
        reg, rs, so = PFS, R_KROW, ("0" if n == 0 else "s%d" % S_PC)
    else:
        rs = {"k": R_PK, "v": R_V, "q": R_Q, "u": R_D0}[a.lower()]
        reg = PF32 if a.isupper() else PF16
        so = MB[n]
    return lambda: e.vmem("buffer_load_dword v%d, v%d, %s, %s offen%s" % (V_PF, reg, srd(rs), so, cfg.pfflag), "pf")


def prog_A_M(e, cfg):
    setup_flags(e)
    kgen_addr(e)
    setup_M(e)
    ev = cfg.aev
    PS = 20
    hk = {cfg.mlead: [lambda: e("s_setprio 2")]}
    if cfg.coop:
        ktables(e, cfg, [0], RAW0, "par", hk, tail=[lambda: flag_read(e)])
        flag_check(e, ev["X"], 0)
        for k in range(3):
            e.lds("ds_read_b128 %s, v%d offset:%d" % (vr(PS + 4 * k, 4), KXE, 256 + 4 * TROW * k), "ps%d" % k)
        e("v_add_f32 v%d, v%d, v%d" % (KT0, KT0, KVD))
        e.wait_lg("ps1")
        for k in range(8):
            e("v_add_f32 v%d, v%d, v%d" % (KT0 + k, KT0 + k, PS + k))

        def t2fix():
            e.wait_lg("ps2")
            for k in (3, 0, 1, 2):
                e("v_fma_f32 v%d, v%d, v%d, v%d" % (KT2 + k, KVU, KT2 + k, PS + 8 + k))
    else:
        ktables(e, cfg, [0, 1], RAW0, "par", hk, pk=True)
        e("v_add_f32 v%d, v%d, v%d" % (KT0, KT0, KVD))

        def t2fix():
            flag_read(e)
            for k in (3, 0, 1, 2):
                e("v_mul_f32 v%d, v%d, v%d" % (KT2 + k, KVU, KT2 + k))
    kexpand(e, cfg, t2fix, 2)
    seen = 0
    prog = dsl_prog(cfg.aprog, ev) if cfg.aprog else main_prog(cfg, ev, cfg.c0first, cfg.merge)
    if not cfg.coop:
        seen = prog[0][3]
        flag_check(e, seen, 1)
    conv(e, cfg, prog, set(), seen, [int(x) for x in cfg.wb.split(",") if x], cfg.mprioA)
    finish(e, cfg)


def prog_A_H(e, cfg):
    L = [loads_A(e, i) for i in range(4)]
    cnt = [0]

    def item(x):
        if x[0] == "L":
            return lambda: run(L[int(x[1])])
        if x[0] == "X":
            return lambda: loads_wide(e, int(x[1]))
        if x[0] == "Y":
            def f(i=int(x[1])):
                e.wait_vm("X%d" % i)
                stamp(e, cfg, 20 + i)
                process_wide(e, i)
                flag_set(e, cfg.aev["D%d" % (2 * i + 1)])
            return f
        if x[0] == "P":
            def f(i=int(x[1])):
                e.wait_vm("D%d" % i)
                stamp(e, cfg, 20 + i)
                process_A(e, i)
                flag_set(e, cfg.aev["D%d" % i])
            return f
        if x[0] == "E":
            def f(i=int(x[1])):
                flag_read(e)
                flag_check(e, i + 1, 0 if i == 3 else 1)
                stamp(e, cfg, 30 + i)
                epilogue(e, "A", i)
            return f
        if x == "K":
            if cfg.off:
                return fetch_k1
            return lambda: flag_set(e, cfg.aev["K1"])
        return pf_item(e, cfg, x)

    def fetch_k1():
        G = 120
        poll, ok, join = newlab("L_poll"), newlab("L_got"), newlab("L_join")
        e("s_waitcnt lgkmcnt(0)")
        e.lg = []
        e("s_add_u32 s%d, s%d, 1" % (S_TAG, S_TAG))
        e("s_movk_i32 s%d, %d" % (S_CNT, cfg.polls))
        e("v_lshlrev_b32 v%d, 4, v%d" % (V_X0, V_LANE))
        e.label(poll)
        for k in range(3):
            e("global_load_dwordx4 %s, v%d, s[%d:%d] offset:%d sc1" % (vr(G + 4 * k, 4), V_X0, S_WS, S_WS + 1, 1024 * k))
        e("s_waitcnt vmcnt(0)")
        e.vm = []
        for k in range(6):
            e("v_xor_b32 v%d, s%d, v%d" % (G + 2 * k + 1, S_TAG, G + 2 * k + 1))
        e("v_or3_b32 v%d, v%d, v%d, v%d" % (V_X1, G + 1, G + 3, G + 5))
        e("v_or3_b32 v%d, v%d, v%d, v%d" % (V_X1, V_X1, G + 7, G + 9))
        e("v_or_b32 v%d, v%d, v%d" % (V_X1, V_X1, G + 11))
        e("v_cmp_ne_u32 s[%d:%d], 0, v%d" % (S_T0, S_T1, V_X1))
        e("s_nop 1")
        e("s_cmp_eq_u64 s[%d:%d], 0" % (S_T0, S_T1))
        e("s_cbranch_scc1 %s" % ok)
        e("s_sub_u32 s%d, s%d, 1" % (S_CNT, S_CNT))
        e("s_cmp_lg_u32 s%d, 0" % S_CNT)
        e("s_cbranch_scc1 %s" % poll)
        e("s_branch L_AH_fallback")
        e.label(ok)
        stamp(e, cfg, 4)
        for k in range(12):
            unpack(e, (KT0 + k) if k < 8 else (KT2 + k - 8), G + 2 * (k >> 1), k & 1)
        for k in range(4):
            e("v_mov_b32 v%d, 0" % (68 + k))
        e.label(join)
        kexpand(e, cfg, lambda: None, 2)
        flag_set(e, cfg.aev["K1"])
        f = Em()
        f.stamps = STAMP_REGS
        f.label("L_AH_fallback")
        f("s_load_dwordx16 s[16:31], s[0:1], 0")
        f("s_load_dwordx2 s[%d:%d], s[0:1], 64" % (P_DSK, P_DSK + 1))
        par_addr(f, S_CH)
        f("s_waitcnt lgkmcnt(0)")
        srd_head(f, R_DD, P_DSK)
        par_loads(f, RAW1, "par1", 0)
        ktables(f, cfg, [0, 1], RAW1, "par1", {}, row0=100)
        f("v_add_f32 v%d, v%d, v%d" % (KT0, KT0, KVD))
        f("s_nop 7")
        for k in range(4):
            f("v_mul_f32 v%d, v%d, v%d" % (KT2 + k, KVU, KT2 + k))
        f("s_waitcnt lgkmcnt(0)")
        f("s_branch %s" % join)
        EXTRA.extend(f.lines)
    hooks = {}
    for part in cfg.ah.split(";"):
        items, at = part.split("@")
        hooks.setdefault(int(at), []).extend(item(x) for x in items.split(","))
    first = hooks.pop(0, [])
    e.cut("L_AH_body")
    if cfg.coop and not cfg.off:
        par_loads(e, RAW1, "par1", 1)
    setup_flags(e)
    if cfg.off:
        if not cfg.coop:
            e.vm = [t for t in e.vm if t != "par"]
        handoff_open(e)
    for r in (R_PK, R_V):
        srd_tail(e, r, 0x400000)
    srd_head(e, R_PK, P_K)
    srd_head(e, R_V, P_V)
    pf_setup(e)
    e("s_mov_b32 s%d, 0x05040100" % S_SELLO)
    e("s_mov_b32 s%d, 0x07060302" % S_SELHI)
    for r in (R_D0, R_Q, R_KROW):
        srd_tail(e, r, 0x400000)
    srd_tail(e, R_OUT, 0x800000)
    srd_head(e, R_D0, P_U)
    srd_head(e, R_Q, P_Q)
    srd_head(e, R_KROW, P_SSK)
    srd_head(e, R_OUT, P_OUT)
    pf_setup2(e)
    setup_H_col(e)
    if "X0" in cfg.ah or "X1" in cfg.ah:
        setup_wide(e)
    run(first)
    setup_H(e, "A")
    kgen_addr(e)
    e("s_setprio 1")
    last = hooks.pop(999)
    if cfg.coop:
        ktables(e, cfg, [1], RAW0, "par", hooks)
        e.lds("ds_write_b128 v%d, %s offset:256" % (KXE, vr(KT0, 4)))
        e.lds("ds_write_b128 v%d, %s offset:%d" % (KXE, vr(KT1, 4), 256 + 4 * TROW))
        e("s_nop 5")
        for k in range(4):
            e("v_mul_f32 v%d, v%d, v%d" % (KT2 + k, KVU, KT2 + k))
        e.lds("ds_write_b128 v%d, %s offset:%d" % (KXE, vr(KT2, 4), 256 + 8 * TROW))
        flag_set(e, cfg.aev["X"])
    if cfg.off:
        run(last)
        finish(e, cfg)
        return
    if cfg.coop:
        run(hooks.pop(100, []))
        ktables(e, cfg, [0, 1], RAW1, "par1", hooks, row0=100)
    else:
        ktables(e, cfg, [0, 1], RAW0, "par", hooks, pk=True)
    e("v_add_f32 v%d, v%d, v%d" % (KT0, KT0, KVD))

    def t2fix():
        for k in (3, 0, 1, 2):
            e("v_mul_f32 v%d, v%d, v%d" % (KT2 + k, KVU, KT2 + k))
    kexpand(e, cfg, t2fix, 2)
    run(last)
    finish(e, cfg)


def generate(cfg):
    e = Em()
    e("s_cmp_ge_u32 s2, 256")
    e("s_cbranch_scc1 L_exit")
    e("s_load_dwordx16 s[16:31], s[0:1], 0")
    e("s_load_dwordx16 s[32:47], s[0:1], 64")
    if cfg.off:
        e("s_load_dwordx2 s[%d:%d], s[0:1], 136" % (S_WS, S_WS + 1))
    if cfg.stamps:
        e("s_memrealtime s[96:97]")
        e("s_mem%stime s[98:99]" % ("real" if cfg.rt else ""))
    if cfg.codepf:
        e("s_getpc_b64 s[%d:%d]" % (S_PC, S_PC + 1))
        e("s_lshr_b32 s%d, s2, 3" % S_T0)
        e("v_and_b32 v%d, 0x1e0, v0" % V_X1)
        e("v_add_lshl_u32 v%d, v%d, s%d, 7" % (V_X1, V_X1, S_T0))
        e("v_min_u32 v%d, L_hot_end-%s_kernel-64, v%d" % (V_X1, NAME, V_X1))
        e.vmem("global_load_dword v%d, v%d, s[%d:%d]" % (V_PF, V_X1, S_PC, S_PC + 1), "pf")
    e("v_lshrrev_b32 v%d, 6, v0" % V_X0)
    e("v_and_b32 v0, 63, v0")
    e("v_readfirstlane_b32 s%d, v%d" % (S_W, V_X0))
    e("s_and_b32 s%d, s2, 7" % S_XCD)
    if cfg.map == 0:
        e("s_lshl_b32 s%d, s%d, 4" % (S_T0, S_XCD))
        e("s_bfe_u32 s%d, s2, 0x40003" % S_T1)
        e("s_add_u32 s%d, s%d, s%d" % (S_CG, S_T0, S_T1))
    else:
        e("s_lshl_b32 s%d, s%d, 3" % (S_T0, S_XCD))
        e("s_bfe_u32 s%d, s2, 0x30003" % S_T1)
        e("s_add_u32 s%d, s%d, s%d" % (S_CG, S_T0, S_T1))
        e("s_and_b32 s%d, s2, 64" % S_T0)
        e("s_add_u32 s%d, s%d, s%d" % (S_CG, S_CG, S_T0))
    e("s_lshl_b32 s%d, s%d, 3" % (S_CH, S_CG))
    e("s_add_u32 s%d, s%d, s%d" % (S_CH, S_CH, S_W))
    e("s_and_b32 s%d, s%d, 3" % (S_H, S_W))
    e("s_cmp_ge_u32 s2, 128")
    e("s_cbranch_scc1 L_B")
    head = e
    start, bodies = list(e.lines), []

    def place(f):
        k = f.lines.index("@CUT")
        start.extend(f.lines[:k])
        bodies.append(f.lines[k + 1:])
    a = head.fork()
    prog_A_common(a, cfg)
    a("s_cmp_lt_u32 s%d, 4" % S_W)
    a("s_cbranch_scc1 L_AM_body")
    start.extend(a.lines)
    f = a.fork(); prog_A_H(f, cfg); place(f)
    f = a.fork(); f.label("L_AM_body"); prog_A_M(f, cfg); bodies.append(f.lines)
    f = head.fork(); f.label("L_B")
    f("s_cmp_ge_u32 s%d, 4" % S_W)
    f("s_cbranch_scc1 L_BH")
    prog_B_M(f, cfg); place(f)
    f = head.fork(); f.label("L_BH"); prog_B_H(f, cfg); place(f)
    out = start
    out.append("L_start_end:")
    for k in (3, 0, 1, 2):
        out += bodies[k]
    out.append("L_hot_end:")
    out += EXTRA
    out.append("L_exit:")
    out.append("    s_endpgm")
    return out


def main():
    ap = argparse.ArgumentParser()
    ap.add_argument("-o", default="cdna_kernels/%s.s" % NAME)
    ap.add_argument("--stamps", action="store_true")
    ap.add_argument("--maxlg", type=int, default=60)
    ap.add_argument("--glead", type=int, default=14)
    ap.add_argument("--lat", type=int, default=6)
    ap.add_argument("--split", default="2220")
    ap.add_argument("--codepf", type=int, default=1)
    ap.add_argument("--ah", default="s0,u0@0;L0@4;s1,v1,k2,k1,v3@20;P0@40;q0@46;v2,k3,u1@50;K,L1,P1,q1,u3,q3,q2,u2,L2,E0,P2,L3,P3,E1,E2,E3@999")
    ap.add_argument("--c0first", type=int, default=1)
    ap.add_argument("--bpf", type=int, default=2)
    ap.add_argument("--coop", type=int, default=0)
    ap.add_argument("--uat", type=int, default=1)
    ap.add_argument("--yat", type=int, default=1)
    ap.add_argument("--lite", type=int, default=0)
    ap.add_argument("--aprog", default="0:07:01/1:07:01/0:27:23/1:27:23/0:47:45/1:47:45/0:67:67/1:67:67")
    ap.add_argument("--bprog", default="0:07:01/1:07:01/0:27:23/1:23:23/1:47:23/0:47:45/1:47:45/0:67:67/1:67:67")
    ap.add_argument("--off", type=int, default=0)
    ap.add_argument("--polls", type=int, default=200)
    ap.add_argument("--k0row", type=int, default=10)
    ap.add_argument("--parfirst", type=int, default=1)
    ap.add_argument("--swz", type=int, default=1)
    ap.add_argument("--w64", type=int, default=0)
    ap.add_argument("--pool", type=int, default=1)
    ap.add_argument("--merge", type=int, default=0)
    ap.add_argument("--maxahead", type=int, default=40)
    ap.add_argument("--map", type=int, default=0)
    ap.add_argument("--rt", type=int, default=0)
    ap.add_argument("--wb", default="")
    ap.add_argument("--wbmask", type=int, default=127)
    ap.add_argument("--stflag", default="")
    ap.add_argument("--mk1", type=int, default=0)
    ap.add_argument("--mprioA", default="0:0")
    ap.add_argument("--mprioB", default="0:0")
    ap.add_argument("--pfflag", default="")
    ap.add_argument("--kstamps", type=int, default=0)
    ap.add_argument("--kmf", type=int, default=6)
    ap.add_argument("--bh", default="P0:0,k,L1,K,L2,P1,L3:8,P2,L3,q0,E0,P3,q1,q2,E1,q3,E2,E3")
    ap.add_argument("--mlead", type=int, default=30)
    cfg = ap.parse_args()
    STFLAG[0] = cfg.stflag
    MAP[0] = cfg.map
    SWZ[0] = cfg.swz
    UAT[0] = cfg.uat
    YAT[0] = cfg.yat
    evs = []
    for part in sorted(cfg.ah.split(";"), key=lambda p: int(p.split("@")[1])):
        if int(part.split("@")[1]) >= 100 and "X" not in evs:
            evs.append("X")
        for x in part.split("@")[0].split(","):
            if x[0] == "P":
                evs.append("D" + x[1])
            elif x[0] == "Y":
                evs += ["D%d" % (2 * int(x[1])), "D%d" % (2 * int(x[1]) + 1)]
            elif x == "K":
                evs.append("K1")
    cfg.aev = {k: i + 1 for i, k in enumerate(evs)}
    evs = [("K1" if x == "K" else "D" + x[1]) for x in cfg.bh.split(",") if x[0] in "PK"]
    cfg.bev = {k: i + 1 for i, k in enumerate(evs)}
    if cfg.mk1:
        assert "K1" not in cfg.bev
        cfg.bev["K1"] = 0
    ref = open("stub.ref").read().splitlines()
    hdr = [l for l in ref if l.startswith(";") and "@launch" not in l]
    txt = hdr + ["; @launch grid=(256,1,1) block=(512,1,1) lds=%d" % LDS_TOTAL,
                 '.amdgcn_target "amdgcn-amd-amdhsa--gfx950"', ".text",
                 ".globl %s_kernel" % NAME, ".p2align 8", ".type %s_kernel,@function" % NAME,
                 "%s_kernel:" % NAME]
    txt += generate(cfg)
    def before(seq, x, y):
        assert x in seq and y in seq and seq.index(x) < seq.index(y), "%s must precede %s" % (x, y)
    bseq = cfg.bh.split(",")
    for i in range(4):
        before(bseq, "q%d" % i, "E%d" % i)
        if i:
            before(bseq, "L%d" % i, "P%d" % i)
            before(bseq, "E%d" % (i - 1), "E%d" % i)
    if not cfg.mk1:
        before(bseq, "k", "K")
    aparts = sorted(cfg.ah.split(";"), key=lambda p: int(p.split("@")[1]))
    aseq = [x for part in aparts for x in part.split("@")[0].split(",")]
    for i in range(4):
        if "X%d" % (i >> 1) in aseq:
            before(aseq, "X%d" % (i >> 1), "Y%d" % (i >> 1))
            assert "L%d" % i not in aseq
        else:
            before(aseq, "L%d" % i, "P%d" % i)
        assert "E%d" % i in aseq
    for part in aparts:
        items, at = part.split("@")
        for x in items.split(","):
            if x[0] in "PY":
                assert int(at) >= 16
            if x[0] == "E" or x == "K":
                assert int(at) == 999
        assert int(at) <= 56 or int(at) >= 100
    aorder = [x for part in sorted(cfg.ah.split(";"), key=lambda p: int(p.split("@")[1])) for x in part.split("@")[0].split(",")]
    for need, seq, ev in ((YNEED[0], aorder, cfg.aev), (YNEED[1], cfg.bh.split(","), cfg.bev)):
        cur = 0
        for x in seq:
            if x[0] == "P":
                cur = ev["D" + x[1]]
            elif x[0] == "Y":
                cur = ev["D%d" % (2 * int(x[1]) + 1)]
            elif x == "K":
                cur = ev["K1"]
            elif x[0] == "E":
                fv = min(k for k in need if k >= int(x[1]) + 1)
                assert cur >= need[fv], "deadlock: %s needs progress %d" % (x, need[fv])
    txt += ['.section .rodata,"a"', ".p2align 6", ".amdhsa_kernel %s_kernel" % NAME,
            "  .amdhsa_next_free_vgpr 256", "  .amdhsa_next_free_sgpr 102", "  .amdhsa_accum_offset 256",
            "  .amdhsa_group_segment_fixed_size 0", "  .amdhsa_kernarg_size 144", "  .amdhsa_user_sgpr_count 2",
            "  .amdhsa_user_sgpr_kernarg_segment_ptr 1", "  .amdhsa_system_sgpr_workgroup_id_x 1",
            ".end_amdhsa_kernel"]
    open(cfg.o, "w").write("\n".join(txt) + "\n")


if __name__ == "__main__":
    main()
```

```python
import sys
NAME="concat_heads__ssm_conv_s4__ssm_conv_h3__prompt"
src,out,kind,mult=sys.argv[1],sys.argv[2],sys.argv[3],int(sys.argv[4])
xs=int(sys.argv[5]) if len(sys.argv)>5 else -1
s=open(src).read()
L=[l for l in s.splitlines() if '@launch' in l][0]
lds=L.split('lds=')[1]
real="; @launch kernel=%s_kernel grid=(256,1,1) block=(512,1,1) lds=%s"%(NAME,lds)
ld="\n".join(f"    s_load_dword s{16+j}, s[4:5], {j*2048+62*4}" for j in range(8))
mn="\n".join(f"    s_min_u32 s16, s16, s{16+j}" for j in range(1,8))
idx={'span':63,'skew':62,'next':62}[kind]
sel="    s_mov_b32 s8, s10\n" if kind=='next' else ""
flt=f"    s_and_b32 s3, s2, 7\n    s_cmp_lg_u32 s3, {xs}\n    s_cbranch_scc1 L_sp_exit\n" if xs>=0 else ""
code=f""".p2align 8
.globl spin_kernel
.type spin_kernel,@function
spin_kernel:
    s_cmp_ge_u32 s2, 256
    s_cbranch_scc1 L_sp_exit
{flt}    s_load_dwordx2 s[4:5], s[0:1], 136
    s_memrealtime s[10:11]
    v_lshrrev_b32 v1, 6, v0
    s_nop 1
    v_readfirstlane_b32 s3, v1
    s_nop 3
    s_lshl_b32 s6, s2, 3
    s_add_u32 s6, s6, s3
    s_lshl_b32 s6, s6, 8
    s_waitcnt lgkmcnt(0)
    s_add_u32 s4, s4, 0x400000
    s_addc_u32 s5, s5, 0
{ld}
    s_add_u32 s4, s4, s6
    s_addc_u32 s5, s5, 0
    s_load_dword s8, s[4:5], {4*idx}
    s_waitcnt lgkmcnt(0)
{mn}
{sel}    s_sub_u32 s8, s8, s16
    s_min_u32 s8, s8, 10000
    s_mul_i32 s8, s8, {mult}
L_sp_loop:
    s_sleep 4
    s_memrealtime s[12:13]
    s_waitcnt lgkmcnt(0)
    s_sub_u32 s14, s12, s10
    s_cmp_lt_u32 s14, s8
    s_cbranch_scc1 L_sp_loop
L_sp_exit:
    s_endpgm
"""
kd=""".p2align 6
.amdhsa_kernel spin_kernel
  .amdhsa_next_free_vgpr 8
  .amdhsa_next_free_sgpr 32
  .amdhsa_accum_offset 8
  .amdhsa_group_segment_fixed_size 0
  .amdhsa_kernarg_size 144
  .amdhsa_user_sgpr_count 2
  .amdhsa_user_sgpr_kernarg_segment_ptr 1
  .amdhsa_system_sgpr_workgroup_id_x 1
.end_amdhsa_kernel
"""
t=s.replace(L,real+"\n; @launch kernel=spin_kernel grid=(256,1,1) block=(512,1,1) lds=0")
t=t.replace('.section .rodata,"a"', code+'.section .rodata,"a"')+kd
open(out,'w').write(t)
```
